```python
import torch

def _softmax(x, axis=-1):
    return torch.softmax(x, dim=axis)
def _gelu(x):
    return torch.nn.functional.gelu(x, approximate="tanh")
def _silu(x):
    return torch.nn.functional.silu(x)
def _sigmoid(x):
    return torch.sigmoid(x)
def _layernorm(x, axis=-1, eps=1e-5):
    m = x.mean(dim=axis, keepdim=True)
    v = x.var(dim=axis, keepdim=True, unbiased=False)
    return (x - m) / torch.sqrt(v + eps)
def _scatter_add(tgt, idx, src, axis=0):
    return tgt.clone().index_add_(axis, idx, src)
def _segment_sum(src, seg, n):
    out = torch.zeros((n,) + src.shape[1:], dtype=src.dtype)
    return out.index_add_(0, seg, src)
def _pad(x, pw):
    flat = tuple(v for pair in reversed(pw) for v in pair)
    return torch.nn.functional.pad(x, flat)

kernel_name = 'parallel_sum__spectral_fnet__dense_activation_relu__prompt'

def setup_inputs():

    _w = (lambda a: (lambda t: t.to(torch.bfloat16) if t.is_floating_point() else t)(torch.as_tensor(a)))
    def _A_setup():
        B, S, D = 1, 2048, 512
        ns = torch.arange(S)[:, None] * torch.arange(S)[None, :]
        nd = torch.arange(D)[:, None] * torch.arange(D)[None, :]
        Ws_re = torch.cos(-2.0 * torch.pi * ns / S).to(float)
        Ws_im = torch.sin(-2.0 * torch.pi * ns / S).to(float)
        Wd_re = torch.cos(-2.0 * torch.pi * nd / D).to(float)
        Wd_im = torch.sin(-2.0 * torch.pi * nd / D).to(float)
        return {
            "x": _w((lambda *s: torch.randn(*s, dtype=torch.bfloat16) * 0.05)(B, S, D)),
            "dft_seq_re": _w(Ws_re),
            "dft_seq_im": _w(Ws_im),
            "dft_hid_re": _w(Wd_re),
            "dft_hid_im": _w(Wd_im),
        }
    _A_in = _A_setup()

    def _B_setup():
        B, S, D, Dff = 1, 2048, 512, 1792
        return {
            "x": _w((lambda *s: torch.randn(*s, dtype=torch.bfloat16) * 0.05)(B, S, D)),
            "w1": _w((lambda *s: torch.randn(*s, dtype=torch.bfloat16) * 0.4)(D, Dff)),
            "w2": _w((lambda *s: torch.randn(*s, dtype=torch.bfloat16) * 0.4)(Dff, D)),
        }
    _B_in = _B_setup()

    return {
        "A_x": _A_in["x"],
        "A_dft_seq_re": _A_in["dft_seq_re"],
        "A_dft_seq_im": _A_in["dft_seq_im"],
        "A_dft_hid_re": _A_in["dft_hid_re"],
        "A_dft_hid_im": _A_in["dft_hid_im"],
        "B_x": _B_in["x"],
        "B_w1": _B_in["w1"],
        "B_w2": _B_in["w2"],
    }

def reference(A_x, A_dft_seq_re, A_dft_seq_im, A_dft_hid_re, A_dft_hid_im, B_x, B_w1, B_w2):
    def _A_ref(x, dft_seq_re, dft_seq_im, dft_hid_re, dft_hid_im):
        a = torch.einsum("bsd,ed->bse", x, dft_hid_re)
        b = torch.einsum("bsd,ed->bse", x, dft_hid_im)
        y = torch.einsum("ts,bse->bte", dft_seq_re, a) - torch.einsum("ts,bse->bte", dft_seq_im, b)
        return y

    def _B_ref(x, w1, w2):
        h = torch.einsum("bsd,df->bsf", x, w1)
        zero = torch.zeros_like(h)
        h = torch.maximum(h, zero)
        return torch.einsum("bsf,fd->bsd", h, w2)

    x = A_x
    xn = _layernorm(x, axis=-1)
    return x + _A_ref(xn, A_dft_seq_re, A_dft_seq_im, A_dft_hid_re, A_dft_hid_im) + _B_ref(xn, B_w1, B_w2)
```

```python
import sys

NAME = "parallel_sum__spectral_fnet__dense_activation_relu__prompt"
OUT = f"cdna_kernels/{NAME}.s"

WS_XN = 0x0
WS_W1T = 0x200000
WS_BT = 0x400000
BT_STRIDE = 11776
WS_H = 0xA00000
WS_PART = 0x1200000
WS_CNT = 0x1E00000
CNT_BYTES = 16384

L = []


def e(s=""):
    L.append(s)


def i(s):
    L.append("    " + s)


def lab(s):
    L.append(s + ":")


def load_args():
    i("s_load_dwordx16 s[16:31], s[0:1], 0")
    i("s_load_dwordx4 s[32:35], s[0:1], 64")
    i("s_load_dwordx2 s[36:37], s[0:1], 80")


def srd(d, lo, hi, off, nbytes):
    if off:
        i(f"s_add_u32 s{d}, s{lo}, 0x{off:x}")
        i(f"s_addc_u32 s{d+1}, s{hi}, 0")
    else:
        i(f"s_mov_b32 s{d}, s{lo}")
        i(f"s_mov_b32 s{d+1}, s{hi}")
    i(f"s_mov_b32 s{d+2}, 0x{nbytes:x}")
    i(f"s_mov_b32 s{d+3}, 0x00020000")


def kernel_header(name):
    e(f".globl {name}")
    e(".p2align 8")
    e(f".type {name},@function")
    lab(name)


def kernel_desc(name, vgpr, sgpr=102):
    acc = (vgpr + 3) // 4 * 4
    e(f".amdhsa_kernel {name}")
    e(f"  .amdhsa_next_free_vgpr {vgpr}")
    e(f"  .amdhsa_next_free_sgpr {sgpr}")
    e(f"  .amdhsa_accum_offset {acc}")
    e("  .amdhsa_group_segment_fixed_size 0")
    e("  .amdhsa_kernarg_size 88")
    e("  .amdhsa_user_sgpr_count 2")
    e("  .amdhsa_user_sgpr_kernarg_segment_ptr 1")
    e("  .amdhsa_system_sgpr_workgroup_id_x 1")
    e(".end_amdhsa_kernel")


def gen_k0():
    kernel_header("k0_prep_kernel")
    i("s_cmpk_ge_u32 s2, 576")
    i("s_cbranch_scc1 K0_END")
    load_args()
    i("s_cmpk_ge_u32 s2, 128")
    i("s_cbranch_scc1 K0_TR")
    i("s_waitcnt lgkmcnt(0)")
    srd(40, 16, 17, 0, 2048 * 1024)
    srd(44, 36, 37, WS_XN, 2048 * 1024)
    srd(48, 36, 37, WS_CNT, CNT_BYTES)
    i("s_cmp_lg_u32 s2, 0")
    i("s_cbranch_scc1 K0_LN")
    i("v_lshlrev_b32 v1, 4, v0")
    for r in range(4):
        i(f"v_mov_b32 v{4+r}, 0")
    for k in range(CNT_BYTES // 4096):
        i(f"buffer_store_dwordx4 v[4:7], v1, s[48:51], 0 offen offset:0" if k == 0 else
          f"buffer_store_dwordx4 v[4:7], v1, s[48:51], s52 offen")
        i(f"s_mov_b32 s52, {4096*(k+1)}")
    lab("K0_LN")
    i("v_lshrrev_b32 v1, 4, v0")
    i("s_lshl_b32 s3, s2, 4")
    i("v_add_u32 v1, s3, v1")
    i("v_lshlrev_b32 v1, 10, v1")
    i("v_and_b32 v2, 15, v0")
    i("v_lshl_add_u32 v1, v2, 4, v1")
    for c in range(4):
        i(f"buffer_load_dwordx4 v[{4+4*c}:{7+4*c}], v1, s[40:43], 0 offen offset:{256*c}")
    i("s_waitcnt vmcnt(0)")
    for k in range(16):
        i(f"v_lshlrev_b32 v{20+2*k}, 16, v{4+k}")
        i(f"v_and_b32 v{21+2*k}, 0xffff0000, v{4+k}")
    i("v_add_f32 v52, v20, v21")
    for k in range(2, 32):
        i(f"v_add_f32 v52, v52, v{20+k}")

    def reduce16(r, t):
        for mod in ["quad_perm:[1,0,3,2]", "quad_perm:[2,3,0,1]", "row_half_mirror", "row_mirror"]:
            i("s_nop 1")
            i(f"v_add_f32_dpp v{t}, v{r}, v{r} {mod} row_mask:0xf bank_mask:0xf")
            i(f"v_mov_b32 v{r}, v{t}")
    reduce16(52, 53)
    i("v_mul_f32 v52, 0x3b000000, v52")
    i("v_sub_f32 v54, v20, v52")
    i("v_mul_f32 v55, v54, v54")
    for k in range(1, 32):
        i(f"v_sub_f32 v54, v{20+k}, v52")
        i(f"v_fmac_f32 v55, v54, v54")
    reduce16(55, 53)
    i("v_mul_f32 v55, 0x3b000000, v55")
    i("v_cvt_pk_bf16_f32 v52, v52, v52")
    i("v_and_b32 v52, 0xffff0000, v52")
    i("v_cvt_pk_bf16_f32 v55, v55, v55")
    i("v_and_b32 v55, 0xffff0000, v55")
    i("v_add_f32 v55, 0x3727c5ac, v55")
    i("v_cvt_pk_bf16_f32 v55, v55, v55")
    i("v_and_b32 v55, 0xffff0000, v55")
    i("v_sqrt_f32 v55, v55")
    i("s_nop 0")
    i("v_cvt_pk_bf16_f32 v55, v55, v55")
    i("v_and_b32 v55, 0xffff0000, v55")
    i("v_rcp_f32 v56, v55")
    i("s_nop 0")
    for k in range(16):
        a, b = 20 + 2 * k, 21 + 2 * k
        i(f"v_sub_f32 v{a}, v{a}, v52")
        i(f"v_sub_f32 v{b}, v{b}, v52")
        i(f"v_cvt_pk_bf16_f32 v57, v{a}, v{b}")
        i(f"v_lshlrev_b32 v{a}, 16, v57")
        i(f"v_and_b32 v{b}, 0xffff0000, v57")
        i(f"v_mul_f32 v58, v{a}, v56")
        i(f"v_mul_f32 v59, v{b}, v56")
        i(f"v_fma_f32 v{a}, -v58, v55, v{a}")
        i(f"v_fma_f32 v{b}, -v59, v55, v{b}")
        i(f"v_fmac_f32 v58, v{a}, v56")
        i(f"v_fmac_f32 v59, v{b}, v56")
        i(f"v_cvt_pk_bf16_f32 v{4+k}, v58, v59")
    for c in range(4):
        i(f"buffer_store_dwordx4 v[{4+4*c}:{7+4*c}], v1, s[44:47], 0 offen offset:{256*c}")
    i("s_endpgm")

    lab("K0_TR")
    i("s_waitcnt lgkmcnt(0)")
    i("s_cmpk_ge_u32 s2, 352")
    i("s_cbranch_scc1 K0_TR2")
    i("s_sub_u32 s3, s2, 128")
    i("s_mul_hi_u32 s4, s3, 0x924924a")
    i("s_mul_i32 s5, s4, 28")
    i("s_sub_u32 s5, s3, s5")
    srd(40, 28, 29, 0, 512 * 3584)
    srd(44, 36, 37, WS_W1T, 1792 * 1024)
    i("s_mov_b32 s6, 3584")
    i("s_mov_b32 s7, 1024")
    i("s_branch K0_TRC")
    lab("K0_TR2")
    i("s_sub_u32 s3, s2, 352")
    i("s_lshr_b32 s4, s3, 3")
    i("s_and_b32 s5, s3, 7")
    srd(40, 30, 31, 0, 1792 * 1024)
    srd(44, 36, 37, WS_BT + 4096 * 2, 512 * BT_STRIDE - 4096 * 2)
    i("s_mov_b32 s6, 1024")
    i(f"s_mov_b32 s7, {BT_STRIDE}")
    lab("K0_TRC")
    i("s_lshl_b32 s8, s4, 6")
    i("s_mul_i32 s8, s8, s6")
    i("s_lshl_b32 s9, s5, 7")
    i("s_add_u32 s8, s8, s9")
    i("s_lshl_b32 s10, s5, 6")
    i("s_mul_i32 s10, s10, s7")
    i("s_lshl_b32 s11, s4, 7")
    i("s_add_u32 s10, s10, s11")
    i("v_lshrrev_b32 v1, 3, v0")
    i("v_and_b32 v2, 7, v0")
    i("v_mul_lo_u32 v3, v1, s6")
    i("v_lshl_add_u32 v3, v2, 4, v3")
    i("s_lshl_b32 s12, s6, 5")
    i("v_add_u32 v4, s12, v3")
    i("buffer_load_dwordx4 v[8:11], v3, s[40:43], s8 offen")
    i("buffer_load_dwordx4 v[12:15], v4, s[40:43], s8 offen")
    i("v_mul_u32_u24 v5, 144, v1")
    i("v_lshl_add_u32 v5, v2, 4, v5")
    i("s_waitcnt vmcnt(0)")
    i("ds_write_b128 v5, v[8:11]")
    i(f"ds_write_b128 v5, v[12:15] offset:{32*144}")
    i("s_waitcnt lgkmcnt(0)")
    i("s_barrier")
    i(f"v_mul_u32_u24 v6, {8*144}, v2")
    i("v_lshl_add_u32 v6, v1, 1, v6")
    for h in range(2):
        for jj in range(4):
            i(f"ds_read_u16 v{16+4*h+jj}, v6 offset:{(2*jj)*144 + 64*h}")
            i(f"ds_read_u16 v{24+4*h+jj}, v6 offset:{(2*jj+1)*144 + 64*h}")
    i("v_mul_lo_u32 v7, v1, s7")
    i("v_lshl_add_u32 v7, v2, 4, v7")
    i("s_lshl_b32 s12, s7, 5")
    i("v_add_u32 v8, s12, v7")
    i("s_waitcnt lgkmcnt(0)")
    for k in range(8):
        i(f"v_lshl_or_b32 v{16+k}, v{24+k}, 16, v{16+k}")
    i("buffer_store_dwordx4 v[16:19], v7, s[44:47], s10 offen")
    i("buffer_store_dwordx4 v[20:23], v8, s[44:47], s10 offen")
    lab("K0_END")
    i("s_endpgm")


class Regs:
    def __init__(self, start):
        self.n = start

    def get(self, cnt=1, align=1):
        self.n = (self.n + align - 1) // align * align
        r = self.n
        self.n += cnt
        return r


def gemm_core(tag, TP, nIter, NST, R, strideP, strideQ, srdP, srdQ,
              sPk, sQk, pre_dma=None, post_dma=None, mid_hook=None):
    TQ = 128
    nPc = TP // 32
    nPf = TP // 32
    nQf = 4
    nF = nPf + nQf
    nD = nPc + 4
    STAGE = (TP + TQ) * 128
    acc = R.get(nPf * nQf * 4, 4)
    F = [R.get(nF * 4, 4), R.get(nF * 4, 4)]
    vPo = [R.get() for _ in range(nPc)]
    vQo = [R.get() for _ in range(4)]
    vt = R.get(4)
    i(f"v_and_b32 v{vt}, 63, v0")
    i(f"v_lshrrev_b32 v{vt+1}, 3, v{vt}")
    i(f"v_and_b32 v{vt+2}, 7, v{vt}")
    i(f"v_xor_b32 v{vt+2}, v{vt+2}, v{vt+1}")
    i(f"v_lshlrev_b32 v{vt+2}, 4, v{vt+2}")
    i(f"s_mul_i32 s63, s60, {nPc*8}")
    i(f"v_add_u32 v{vt+3}, s63, v{vt+1}")
    i(f"s_mov_b32 s63, {strideP}")
    i(f"v_mul_lo_u32 v{vt+3}, v{vt+3}, s63")
    i(f"v_add_u32 v{vt+3}, v{vt+3}, v{vt+2}")
    i(f"v_add_u32 v{vt+3}, s61, v{vt+3}")
    for j in range(nPc):
        d = j * 8 * strideP - (j % 4) * 1024
        i(f"v_add_u32 v{vPo[j]}, 0x{d:x}, v{vt+3}" if d else f"v_mov_b32 v{vPo[j]}, v{vt+3}")
    i(f"s_lshl_b32 s63, s60, 5")
    i(f"v_add_u32 v{vt+3}, s63, v{vt+1}")
    i(f"s_mov_b32 s63, {strideQ}")
    i(f"v_mul_lo_u32 v{vt+3}, v{vt+3}, s63")
    i(f"v_add_u32 v{vt+3}, v{vt+3}, v{vt+2}")
    i(f"v_add_u32 v{vt+3}, s62, v{vt+3}")
    for j in range(4):
        d = j * 8 * strideQ - j * 1024
        i(f"v_add_u32 v{vQo[j]}, 0x{d:x}, v{vt+3}" if d else f"v_mov_b32 v{vQo[j]}, v{vt+3}")
    i(f"s_mul_i32 s64, s60, {nPc*1024}")
    i(f"s_lshl_b32 s65, s60, 12")
    i(f"s_add_u32 s65, s65, {TP*128}")
    i(f"v_and_b32 v{vt+1}, 15, v{vt}")
    i(f"v_lshrrev_b32 v{vt+2}, 4, v{vt}")
    i(f"v_and_b32 v{vt+3}, 7, v{vt}")
    i(f"v_xor_b32 v{vt+2}, v{vt+2}, v{vt+3}")
    i(f"v_lshlrev_b32 v{vt+2}, 4, v{vt+2}")
    i(f"v_lshl_add_u32 v{vt+2}, v{vt+1}, 7, v{vt+2}")
    i(f"s_lshr_b32 s66, s60, 1")
    i(f"s_and_b32 s67, s60, 1")
    i(f"s_mul_i32 s68, s66, {nPf*16*128}")
    i(f"s_lshl_b32 s69, s67, 13")
    i(f"s_add_u32 s69, s69, {TP*128}")
    nhb = (NST * STAGE + 65535) // 65536
    vR = {}
    for hb in range(nhb):
        for ks in range(2):
            for op in range(2):
                r = R.get()
                vR[(hb, ks, op)] = r
                i(f"v_add_u32 v{r}, s{68+op}, v{vt+2}")
                if ks:
                    i(f"v_xor_b32 v{r}, 64, v{r}")
                if hb:
                    i(f"v_add_u32 v{r}, 0x{hb*65536:x}, v{r}")

    def dma(stage):
        slot = stage % NST
        base = slot * STAGE
        if pre_dma:
            pre_dma(stage)
        for j in range(nPc):
            if j % 4 == 0:
                i(f"s_add_u32 m0, s64, 0x{base + j*1024:x}")
                i("s_nop 0")
            o = (j % 4) * 1024
            i(f"buffer_load_dwordx4 v{vPo[j]}, s[{srdP}:{srdP+3}], {sPk} offen offset:{o} lds")
        i(f"s_add_u32 m0, s65, 0x{base:x}")
        i("s_nop 0")
        for j in range(4):
            i(f"buffer_load_dwordx4 v{vQo[j]}, s[{srdQ}:{srdQ+3}], {sQk} offen offset:{j*1024} lds")
        if post_dma:
            post_dma(stage)

    def frags(stage, ks):
        slot = stage % NST
        f = F[ks]
        for op, n, ob in ((0, nPf, 0), (1, nQf, nPf)):
            for k in range(n):
                tot = slot * STAGE + k * 2048
                hb, o = tot >> 16, tot & 0xffff
                r = f + (ob + k) * 4
                i(f"ds_read_b128 v[{r}:{r+3}], v{vR[(hb, ks, op)]} offset:{o}")

    def mfmas(ks, first):
        f = F[ks]
        for p in range(nPf):
            for q in range(nQf):
                a = acc + (p * nQf + q) * 4
                c = "0" if first else f"v[{a}:{a+3}]"
                i(f"v_mfma_f32_16x16x32_bf16 v[{a}:{a+3}], v[{f+p*4}:{f+p*4+3}], "
                  f"v[{f+(nPf+q)*4}:{f+(nPf+q)*4+3}], {c}")

    npro = min(NST - 1, nIter)
    for s in range(npro):
        dma(s)
    i(f"s_waitcnt vmcnt({nD*(npro-1)})")
    i("s_barrier")
    frags(0, 0)
    for it in range(nIter):
        frags(it, 1)
        i(f"s_waitcnt lgkmcnt({nF})")
        mfmas(0, it == 0)
        if it + 1 < nIter:
            last = min(it + NST - 2, nIter - 1)
            i(f"s_waitcnt vmcnt({nD*(last-(it+1))})")
            i("s_barrier")
            if it + NST - 1 < nIter:
                dma(it + NST - 1)
            if mid_hook:
                mid_hook(it)
            frags(it + 1, 0)
            i(f"s_waitcnt lgkmcnt({nF})")
        else:
            i("s_waitcnt lgkmcnt(0)")
        mfmas(1, False)
    i("s_nop 7")
    i("s_nop 7")
    return dict(acc=acc, nPf=nPf, nQf=nQf, vt=vt, F=F)


def wave_id():
    i("v_lshrrev_b32 v1, 6, v0")
    i("s_nop 0")
    i("v_readfirstlane_b32 s60, v1")


def k1_epilogue(tag, c, TP, R, srdO, s_out_base, out_stride, relu):
    acc, nPf, nQf, vt = c["acc"], c["nPf"], c["nQf"], c["vt"]
    RS = TP * 2 + 16
    i("s_barrier")
    i(f"v_and_b32 v{vt}, 63, v0")
    i(f"v_and_b32 v{vt+1}, 15, v{vt}")
    i(f"v_lshrrev_b32 v{vt+2}, 4, v{vt}")
    i(f"s_lshl_b32 s63, s67, 6")
    i(f"v_add_u32 v{vt+1}, s63, v{vt+1}")
    i(f"v_mul_u32_u24 v{vt+1}, {RS}, v{vt+1}")
    i(f"v_lshl_add_u32 v{vt+1}, v{vt+2}, 3, v{vt+1}")
    i(f"s_mul_i32 s63, s66, {TP}")
    i(f"v_add_u32 v{vt+1}, s63, v{vt+1}")
    t0 = c["F"][0]
    for p in range(nPf):
        for q in range(nQf):
            a = acc + (p * nQf + q) * 4
            if relu:
                for r in range(4):
                    i(f"v_max_f32 v{a+r}, 0, v{a+r}")
            else:
                for r in range(4):
                    i(f"v_mul_f32 v{a+r}, s70, v{a+r}")
            i(f"v_cvt_pk_bf16_f32 v{t0}, v{a}, v{a+1}")
            i(f"v_cvt_pk_bf16_f32 v{t0+1}, v{a+2}, v{a+3}")
            i(f"ds_write_b64 v{vt+1}, v[{t0}:{t0+1}] offset:{q*16*RS + p*32}")
    i("s_waitcnt lgkmcnt(0)")
    i("s_barrier")
    if TP == 128:
        lpr, nit, rows_per = 16, 8, 16
    else:
        lpr, nit, rows_per = 32, 16, 8
    sh = 4 if lpr == 16 else 5
    i(f"v_and_b32 v{vt+1}, {lpr-1}, v0")
    i(f"v_lshrrev_b32 v{vt+2}, {sh}, v0")
    i(f"v_mul_u32_u24 v{vt+3}, {RS}, v{vt+2}")
    i(f"v_lshl_add_u32 v{vt+3}, v{vt+1}, 4, v{vt+3}")
    i(f"s_mov_b32 s63, {out_stride}")
    i(f"v_mul_lo_u32 v{vt+2}, v{vt+2}, s63")
    i(f"v_lshl_add_u32 v{vt+2}, v{vt+1}, 4, v{vt+2}")
    if lpr == 32:
        i(f"v_cmp_gt_u32 vcc, {TP*2//16}, v{vt+1}")
        i("s_and_saveexec_b64 s[72:73], vcc")
    B = 8
    for it0 in range(0, nit, B):
        for it in range(it0, it0 + B):
            r = acc + (it - it0) * 4
            i(f"ds_read_b128 v[{r}:{r+3}], v{vt+3} offset:{it*rows_per*RS}")
        for it in range(it0, it0 + B):
            r = acc + (it - it0) * 4
            i(f"s_waitcnt lgkmcnt({B-1-(it-it0)})")
            i(f"s_add_u32 s63, {s_out_base}, {it*rows_per*out_stride}")
            i(f"buffer_store_dwordx4 v[{r}:{r+3}], v{vt+2}, s[{srdO}:{srdO+3}], s63 offen")
        if it0 + B < nit:
            i("s_waitcnt vmcnt(0)")
    if lpr == 32:
        i("s_mov_b64 exec, s[72:73]")


def gen_k1():
    kernel_header("k1_gemm1_kernel")
    i("s_cmpk_ge_u32 s2, 256")
    i("s_cbranch_scc1 K1_END")
    load_args()
    wave_id()
    i("s_and_b32 s4, s2, 7")
    i("s_lshr_b32 s5, s2, 3")
    i("s_and_b32 s6, s5, 1")
    i("s_lshl_add_u32 s6, s4, s6" if False else "s_lshl_b32 s4, s4, 1")
    i("s_add_u32 s6, s4, s6")
    i("s_lshr_b32 s7, s5, 2")
    i("s_bitcmp1_b32 s5, 1")
    i("s_waitcnt lgkmcnt(0)")
    i("s_cbranch_scc1 K1_H")
    srd(40, 36, 37, WS_XN, 2048 * 1024)
    i("s_cmp_lt_u32 s7, 4")
    i("s_cselect_b32 s44, s22, s24")
    i("s_cselect_b32 s45, s23, s25")
    i("s_mov_b32 s46, 0x80000")
    i("s_mov_b32 s47, 0x00020000")
    i("s_cselect_b32 s70, 0x3f800000, 0xbf800000")
    i("s_cselect_b32 s71, 0, 4096")
    srd(48, 36, 37, WS_BT, 512 * BT_STRIDE)
    i("s_lshl_b32 s61, s6, 17")
    i("s_and_b32 s8, s7, 3")
    i("s_lshl_b32 s62, s8, 17")
    i(f"s_mul_i32 s9, s8, {128*BT_STRIDE}")
    i("s_add_u32 s9, s9, s71")
    i("s_lshl_b32 s10, s6, 8")
    i("s_add_u32 s9, s9, s10")
    i("s_mov_b32 s11, 0")

    def post(stage):
        i("s_add_u32 s11, s11, 128")
    R = Regs(2)
    c = gemm_core("ab", 128, 8, 4, R, 1024, 1024, 40, 44, "s11", "s11", post_dma=post)
    k1_epilogue("ab", c, 128, R, 48, "s9", BT_STRIDE, relu=False)
    vg = R.n
    i("s_endpgm")
    lab("K1_H")
    srd(40, 36, 37, WS_W1T, 1792 * 1024)
    srd(44, 36, 37, WS_XN, 2048 * 1024)
    srd(48, 36, 37, WS_H, 2048 * 4096)
    i(f"s_mul_i32 s61, s7, {224*1024}")
    i("s_lshl_b32 s62, s6, 17")
    i("s_lshl_b32 s9, s6, 19")
    i(f"s_mul_i32 s10, s7, 448")
    i("s_add_u32 s9, s9, s10")
    i("s_mov_b32 s11, 0")
    R = Regs(2)
    c = gemm_core("h", 224, 8, 3, R, 1024, 1024, 40, 44, "s11", "s11", post_dma=post)
    k1_epilogue("h", c, 224, R, 48, "s9", 4096, relu=True)
    vg = max(vg, R.n)
    lab("K1_END")
    i("s_endpgm")
    return vg


def gen_k2():
    kernel_header("k2_gemm2_kernel")
    i("s_cmpk_ge_u32 s2, 256")
    i("s_cbranch_scc1 K2_END")
    load_args()
    wave_id()
    i("s_and_b32 s4, s2, 7")
    i("s_lshr_b32 s5, s2, 3")
    i("s_lshr_b32 s6, s4, 1")
    i("s_and_b32 s7, s4, 1")
    i("s_lshl_b32 s7, s7, 3")
    i("s_lshr_b32 s8, s5, 2")
    i("s_add_u32 s7, s7, s8")
    i("s_and_b32 s8, s5, 3")
    i("s_lshl_b32 s9, s7, 2")
    i("s_add_u32 s9, s9, s8")
    i("s_waitcnt lgkmcnt(0)")
    srd(40, 36, 37, WS_BT, 512 * BT_STRIDE)
    i("s_mul_i32 s10, s6, 23")
    i("s_lshl_b32 s11, s10, 7")
    i("s_and_b32 s12, s10, 31")
    i("s_lshl_b32 s12, s12, 7")
    i(f"s_add_u32 s14, s36, 0x{WS_H:x}")
    i("s_addc_u32 s15, s37, 0")
    i("s_cmp_ge_u32 s10, 32")
    i("s_cselect_b32 s44, s20, s18")
    i("s_cselect_b32 s45, s21, s19")
    i("s_cmp_ge_u32 s10, 64")
    i("s_cselect_b32 s44, s14, s44")
    i("s_cselect_b32 s45, s15, s45")
    i("s_mov_b32 s46, 0x800000")
    i("s_mov_b32 s47, 0x00020000")
    srd(48, 32, 33, 0, 2048 * 1024)
    srd(52, 16, 17, 0, 2048 * 1024)
    srd(56, 36, 37, WS_PART, 64 * 3 * 65536)
    srd(76, 36, 37, WS_CNT, CNT_BYTES)
    i(f"s_mul_i32 s61, s8, {128*BT_STRIDE}")
    i("s_lshl_b32 s62, s7, 19")

    def post(stage):
        i("s_add_u32 s11, s11, 128")
        i("s_add_u32 s12, s12, 128")
        i("s_add_u32 s10, s10, 1")
        i("s_cmp_eq_u32 s10, 32")
        i("s_cselect_b32 s44, s20, s44")
        i("s_cselect_b32 s45, s21, s45")
        i("s_cselect_b32 s12, 0, s12")
        i("s_cmp_eq_u32 s10, 64")
        i("s_cselect_b32 s44, s14, s44")
        i("s_cselect_b32 s45, s15, s45")
        i("s_cselect_b32 s12, 0, s12")
    R = Regs(2)
    c = gemm_core("k2", 128, 23, 4, R, BT_STRIDE, 4096, 40, 44, "s11", "s12", post_dma=post)
    acc, vt = c["acc"], c["vt"]
    F0 = c["F"][0]
    i("s_barrier")
    i("s_lshl_b32 s13, s9, 7")
    i("s_cmp_lg_u32 s60, 0")
    i("s_cbranch_scc1 K2_T1")
    i("s_mov_b64 exec, 1")
    i(f"v_mov_b32 v{vt}, s13")
    i(f"v_mov_b32 v{vt+1}, 1")
    i(f"buffer_atomic_add v{vt+1}, v{vt}, s[76:79], 0 offen sc0 sc1")
    i("s_waitcnt vmcnt(0)")
    i(f"v_mov_b32 v{vt}, 0")
    i(f"ds_write_b32 v{vt}, v{vt+1}")
    i("s_waitcnt lgkmcnt(0)")
    i("s_mov_b64 exec, -1")
    lab("K2_T1")
    i("s_barrier")
    i(f"v_mov_b32 v{vt}, 0")
    i(f"ds_read_b32 v{vt+1}, v{vt}")
    i("s_waitcnt lgkmcnt(0)")
    i(f"v_readfirstlane_b32 s74, v{vt+1}")
    i("s_and_b32 s74, s74, 0xffff")
    i(f"v_and_b32 v{vt}, 63, v0")
    i(f"v_lshlrev_b32 v{vt}, 4, v{vt}")
    i("s_lshl_b32 s75, s60, 14")
    i(f"v_add_u32 v{vt}, s75, v{vt}")
    i("s_mul_i32 s75, s9, 3")
    i("s_cmp_ge_u32 s74, 3")
    i("s_cbranch_scc1 K2_LAST")
    i("s_add_u32 s75, s75, s74")
    i("s_lshl_b32 s75, s75, 16")
    for r in range(16):
        if r % 4 == 0 and r:
            i("s_add_u32 s75, s75, 4096")
        i(f"buffer_store_dwordx4 v[{acc+4*r}:{acc+4*r+3}], v{vt}, s[56:59], s75 offen offset:{(r%4)*1024} sc0 sc1")
    i("s_waitcnt vmcnt(0)")
    i("s_barrier")
    i("s_cmp_lg_u32 s60, 0")
    i("s_cbranch_scc1 K2_END")
    i("s_mov_b64 exec, 1")
    i(f"v_mov_b32 v{vt}, s13")
    i(f"v_mov_b32 v{vt+1}, 0x10000")
    i(f"buffer_atomic_add v{vt+1}, v{vt}, s[76:79], 0 offen sc1")
    i("s_endpgm")
    lab("K2_LAST")
    i("s_lshl_b32 s75, s75, 16")
    i("s_cmp_lg_u32 s60, 0")
    i("s_cbranch_scc1 K2_L1")
    i("s_mov_b64 exec, 1")
    i(f"v_mov_b32 v{vt+1}, s13")
    lab("K2_POLL")
    i(f"buffer_load_dword v{vt+2}, v{vt+1}, s[76:79], 0 offen sc0 sc1")
    i("s_waitcnt vmcnt(0)")
    i(f"v_readfirstlane_b32 s74, v{vt+2}")
    i("s_lshr_b32 s74, s74, 16")
    i("s_cmp_ge_u32 s74, 3")
    i("s_cbranch_scc1 K2_PD")
    i("s_sleep 2")
    i("s_branch K2_POLL")
    lab("K2_PD")
    i("s_mov_b64 exec, -1")
    lab("K2_L1")
    i("s_barrier")
    PB0 = F0
    PB = R.get(64, 4)
    XB = R.get(32, 4)

    def pload(dst, first):
        for r in range(16):
            if r == 0 and not first:
                i(f"s_add_u32 s75, s75, {65536-12288}")
            elif r % 4 == 0 and r:
                i("s_add_u32 s75, s75, 4096")
            d = dst + r * 4
            i(f"buffer_load_dwordx4 v[{d}:{d+3}], v{vt}, s[56:59], s75 offen offset:{(r%4)*1024} sc0 sc1")

    def padd(src, cnt0):
        for r in range(16):
            i(f"s_waitcnt vmcnt({cnt0 - r})")
            d = src + r * 4
            for k in range(4):
                i(f"v_add_f32 v{acc+4*r+k}, v{acc+4*r+k}, v{d+k}")
    pload(PB0, True)
    pload(PB, False)
    i(f"v_lshrrev_b32 v{vt+1}, 4, v0")
    i(f"v_and_b32 v{vt+2}, 15, v0")
    i(f"v_lshlrev_b32 v{vt+3}, 10, v{vt+1}")
    i(f"v_lshl_add_u32 v{vt+3}, v{vt+2}, 4, v{vt+3}")
    i("s_lshl_b32 s80, s7, 17")
    i("s_lshl_b32 s81, s8, 8")
    i("s_add_u32 s80, s80, s81")
    i("s_mov_b32 s81, s80")
    for it in range(8):
        i(f"buffer_load_dwordx4 v[{XB+4*it}:{XB+4*it+3}], v{vt+3}, s[52:55], s81 offen")
        i("s_add_u32 s81, s81, 16384")
    padd(PB0, 39)
    pload(PB0, False)
    padd(PB, 39)
    padd(PB0, 15)
    RS = 528
    T = F0
    i(f"v_and_b32 v{T}, 63, v0")
    i(f"v_and_b32 v{T+1}, 15, v{T}")
    i(f"v_lshrrev_b32 v{T+2}, 4, v{T}")
    i("s_lshl_b32 s63, s67, 6")
    i(f"v_add_u32 v{T+1}, s63, v{T+1}")
    i(f"v_mul_u32_u24 v{T+1}, {RS}, v{T+1}")
    i(f"v_lshl_add_u32 v{T+1}, v{T+2}, 4, v{T+1}")
    i("s_lshl_b32 s63, s66, 8")
    i(f"v_add_u32 v{T+1}, s63, v{T+1}")
    for p in range(4):
        for q in range(4):
            a = acc + (p * 4 + q) * 4
            i(f"ds_write_b128 v{T+1}, v[{a}:{a+3}] offset:{q*16*RS + p*64}")
    i("s_waitcnt lgkmcnt(0)")
    i("s_barrier")
    i(f"v_mul_u32_u24 v{T}, {RS}, v{vt+1}")
    i(f"v_lshl_add_u32 v{T}, v{vt+2}, 5, v{T}")
    for it in range(8):
        d = PB + it * 8
        i(f"ds_read_b128 v[{d}:{d+3}], v{T} offset:{it*16*RS}")
        i(f"ds_read_b128 v[{d+4}:{d+7}], v{T} offset:{it*16*RS+16}")
    i("s_waitcnt vmcnt(0)")
    for it in range(8):
        d = PB + it * 8
        i(f"s_waitcnt lgkmcnt({14-2*it})")
        for k in range(4):
            x = XB + it * 4 + k
            i(f"v_lshlrev_b32 v{T+2}, 16, v{x}")
            i(f"v_and_b32 v{T+3}, 0xffff0000, v{x}")
            i(f"v_add_f32 v{d+2*k}, v{d+2*k}, v{T+2}")
            i(f"v_add_f32 v{d+2*k+1}, v{d+2*k+1}, v{T+3}")
            i(f"v_cvt_pk_bf16_f32 v{x}, v{d+2*k}, v{d+2*k+1}")
        i(f"buffer_store_dwordx4 v[{XB+4*it}:{XB+4*it+3}], v{vt+3}, s[48:51], s80 offen")
        i("s_add_u32 s80, s80, 16384")
    lab("K2_END")
    i("s_endpgm")
    return R.n


def main():
    e("; Kernarg layout (88 bytes, ptrs only, base s[0:1]):")
    e("; @launch kernel=k0_prep_kernel grid=(576,1,1) block=(256,1,1) lds=9216")
    e("; @launch kernel=k1_gemm1_kernel grid=(256,1,1) block=(256,1,1) lds=135168")
    e("; @launch kernel=k2_gemm2_kernel grid=(256,1,1) block=(256,1,1) lds=131072")
    e('.amdgcn_target "amdgcn-amd-amdhsa--gfx950"')
    e(".text")
    gen_k0()
    v1 = gen_k1()
    v2 = gen_k2()
    e('.section .rodata,"a"')
    e(".p2align 6")
    kernel_desc("k0_prep_kernel", 64)
    e(".p2align 6")
    kernel_desc("k1_gemm1_kernel", v1)
    e(".p2align 6")
    kernel_desc("k2_gemm2_kernel", v2)
    open(OUT, "w").write("\n".join(L) + "\n")
    print("vgprs", v1, v2, "lines", len(L))


main()
```

```python
import sys

NAME = "parallel_sum__spectral_fnet__dense_activation_relu__prompt"
OUT = f"cdna_kernels/{NAME}.s"
if len(sys.argv) > 1 and sys.argv[1] == "stamp":
    OUT = f"diag/{NAME}.s"
if len(sys.argv) > 2:
    OUT = sys.argv[2]

WS_XN = 0x0
WS_W1T = 0x200000
WS_BT = 0x400000
BT_STRIDE = 11776
WS_H = 0xA00000
WS_PART = 0x1200000
WS_CNT = 0x1E00000
CNT_BYTES = 16384

L = []
import os
SC = os.environ.get("SC", "")


def e(s=""):
    L.append(s)


def i(s):
    L.append("    " + s)


def lab(s):
    L.append(s + ":")


def load_args():
    i("s_load_dwordx16 s[16:31], s[0:1], 0")
    i("s_load_dwordx4 s[32:35], s[0:1], 64")
    i("s_load_dwordx2 s[36:37], s[0:1], 80")


def srd(d, lo, hi, off, nbytes):
    if off:
        i(f"s_add_u32 s{d}, s{lo}, 0x{off:x}")
        i(f"s_addc_u32 s{d+1}, s{hi}, 0")
    else:
        i(f"s_mov_b32 s{d}, s{lo}")
        i(f"s_mov_b32 s{d+1}, s{hi}")
    i(f"s_mov_b32 s{d+2}, 0x{nbytes:x}")
    i(f"s_mov_b32 s{d+3}, 0x00020000")


STAMP = len(sys.argv) > 1 and sys.argv[1] == "stamp"
WS_DBG = 0x2000000


def stamp(k):
    if STAMP:
        i(f"s_memrealtime s[{88+2*k}:{89+2*k}]")
        i("s_waitcnt lgkmcnt(0)")


SFN = [0]


def stamp_flush(kidx):
    if not STAMP:
        return
    SFN[0] += 1
    lbl = f"SF_{SFN[0]}"
    i("s_waitcnt lgkmcnt(0)")
    i("s_cmp_lg_u32 s60, 0")
    i(f"s_cbranch_scc1 {lbl}")
    i("s_mov_b64 exec, 1")
    i(f"s_add_u32 s4, s36, 0x{WS_DBG + kidx*0x10000:x}")
    i("s_addc_u32 s5, s37, 0")
    i("s_mov_b32 s6, 0x10000")
    i("s_mov_b32 s7, 0x00020000")
    i("s_lshl_b32 s8, s2, 6")
    i("v_mov_b32 v1, s8")
    for k in range(6):
        i(f"v_mov_b32 v2, s{88+2*k}")
        i(f"v_mov_b32 v3, s{89+2*k}")
        i(f"buffer_store_dwordx2 v[2:3], v1, s[4:7], 0 offen offset:{8*k}")
        i("s_nop 1")
    lab(lbl)


def kernel_header(name):
    e(f".globl {name}")
    e(".p2align 8")
    e(f".type {name},@function")
    lab(name)


def kernel_desc(name, vgpr, sgpr=102):
    acc = (vgpr + 3) // 4 * 4
    e(f".amdhsa_kernel {name}")
    e(f"  .amdhsa_next_free_vgpr {vgpr}")
    e(f"  .amdhsa_next_free_sgpr {sgpr}")
    e(f"  .amdhsa_accum_offset {acc}")
    e("  .amdhsa_group_segment_fixed_size 0")
    e("  .amdhsa_kernarg_size 88")
    e("  .amdhsa_user_sgpr_count 2")
    e("  .amdhsa_user_sgpr_kernarg_segment_ptr 1")
    e("  .amdhsa_system_sgpr_workgroup_id_x 1")
    e(".end_amdhsa_kernel")


def gen_k0():
    kernel_header("k0_prep_kernel")
    i("s_cmpk_ge_u32 s2, 576")
    i("s_cbranch_scc1 K0_END")
    load_args()
    i("s_cmpk_ge_u32 s2, 128")
    i("s_cbranch_scc1 K0_TR")
    i("s_waitcnt lgkmcnt(0)")
    srd(40, 16, 17, 0, 2048 * 1024)
    srd(44, 36, 37, WS_XN, 2048 * 1024)
    srd(48, 36, 37, WS_CNT, CNT_BYTES)
    i("s_cmp_lg_u32 s2, 0")
    i("s_cbranch_scc1 K0_LN")
    i("v_lshlrev_b32 v1, 4, v0")
    for r in range(4):
        i(f"v_mov_b32 v{4+r}, 0")
    for k in range(CNT_BYTES // 4096):
        i(f"buffer_store_dwordx4 v[4:7], v1, s[48:51], 0 offen offset:0" if k == 0 else
          f"buffer_store_dwordx4 v[4:7], v1, s[48:51], s52 offen")
        i(f"s_mov_b32 s52, {4096*(k+1)}")
    lab("K0_LN")
    i("v_lshrrev_b32 v1, 4, v0")
    i("s_lshl_b32 s3, s2, 4")
    i("v_add_u32 v1, s3, v1")
    i("v_lshlrev_b32 v1, 10, v1")
    i("v_and_b32 v2, 15, v0")
    i("v_lshl_add_u32 v1, v2, 4, v1")
    for c in range(4):
        i(f"buffer_load_dwordx4 v[{4+4*c}:{7+4*c}], v1, s[40:43], 0 offen offset:{256*c}")
    i("s_waitcnt vmcnt(0)")
    for k in range(16):
        i(f"v_lshlrev_b32 v{20+2*k}, 16, v{4+k}")
        i(f"v_and_b32 v{21+2*k}, 0xffff0000, v{4+k}")
    i("v_add_f32 v52, v20, v21")
    for k in range(2, 32):
        i(f"v_add_f32 v52, v52, v{20+k}")

    def reduce16(r, t):
        for mod in ["quad_perm:[1,0,3,2]", "quad_perm:[2,3,0,1]", "row_half_mirror", "row_mirror"]:
            i("s_nop 1")
            i(f"v_add_f32_dpp v{t}, v{r}, v{r} {mod} row_mask:0xf bank_mask:0xf")
            i(f"v_mov_b32 v{r}, v{t}")
    reduce16(52, 53)
    i("v_mul_f32 v52, 0x3b000000, v52")
    i("v_sub_f32 v54, v20, v52")
    i("v_mul_f32 v55, v54, v54")
    for k in range(1, 32):
        i(f"v_sub_f32 v54, v{20+k}, v52")
        i(f"v_fmac_f32 v55, v54, v54")
    reduce16(55, 53)
    i("v_mul_f32 v55, 0x3b000000, v55")
    i("v_cvt_pk_bf16_f32 v52, v52, v52")
    i("v_and_b32 v52, 0xffff0000, v52")
    i("v_cvt_pk_bf16_f32 v55, v55, v55")
    i("v_and_b32 v55, 0xffff0000, v55")
    i("v_add_f32 v55, 0x3727c5ac, v55")
    i("v_cvt_pk_bf16_f32 v55, v55, v55")
    i("v_and_b32 v55, 0xffff0000, v55")
    i("v_sqrt_f32 v55, v55")
    i("s_nop 0")
    i("v_cvt_pk_bf16_f32 v55, v55, v55")
    i("v_and_b32 v55, 0xffff0000, v55")
    i("v_rcp_f32 v56, v55")
    i("s_nop 0")
    for k in range(16):
        a, b = 20 + 2 * k, 21 + 2 * k
        i(f"v_sub_f32 v{a}, v{a}, v52")
        i(f"v_sub_f32 v{b}, v{b}, v52")
        i(f"v_cvt_pk_bf16_f32 v57, v{a}, v{b}")
        i(f"v_lshlrev_b32 v{a}, 16, v57")
        i(f"v_and_b32 v{b}, 0xffff0000, v57")
        i(f"v_mul_f32 v58, v{a}, v56")
        i(f"v_mul_f32 v59, v{b}, v56")
        i(f"v_fma_f32 v{a}, -v58, v55, v{a}")
        i(f"v_fma_f32 v{b}, -v59, v55, v{b}")
        i(f"v_fmac_f32 v58, v{a}, v56")
        i(f"v_fmac_f32 v59, v{b}, v56")
        i(f"v_cvt_pk_bf16_f32 v{4+k}, v58, v59")
    for c in range(4):
        i(f"buffer_store_dwordx4 v[{4+4*c}:{7+4*c}], v1, s[44:47], 0 offen offset:{256*c}{SC}")
    i("s_endpgm")

    lab("K0_TR")
    i("s_waitcnt lgkmcnt(0)")
    i("s_cmpk_ge_u32 s2, 352")
    i("s_cbranch_scc1 K0_TR2")
    i("s_sub_u32 s3, s2, 128")
    i("s_mul_hi_u32 s4, s3, 0x924924a")
    i("s_mul_i32 s5, s4, 28")
    i("s_sub_u32 s5, s3, s5")
    srd(40, 28, 29, 0, 512 * 3584)
    srd(44, 36, 37, WS_W1T, 1792 * 1024)
    i("s_mov_b32 s6, 3584")
    i("s_mov_b32 s7, 1024")
    i("s_branch K0_TRC")
    lab("K0_TR2")
    i("s_sub_u32 s3, s2, 352")
    i("s_lshr_b32 s4, s3, 3")
    i("s_and_b32 s5, s3, 7")
    srd(40, 30, 31, 0, 1792 * 1024)
    srd(44, 36, 37, WS_BT + 4096 * 2, 512 * BT_STRIDE - 4096 * 2)
    i("s_mov_b32 s6, 1024")
    i(f"s_mov_b32 s7, {BT_STRIDE}")
    lab("K0_TRC")
    i("s_lshl_b32 s8, s4, 6")
    i("s_mul_i32 s8, s8, s6")
    i("s_lshl_b32 s9, s5, 7")
    i("s_add_u32 s8, s8, s9")
    i("s_lshl_b32 s10, s5, 6")
    i("s_mul_i32 s10, s10, s7")
    i("s_lshl_b32 s11, s4, 7")
    i("s_add_u32 s10, s10, s11")
    i("v_lshrrev_b32 v1, 3, v0")
    i("v_and_b32 v2, 7, v0")
    i("v_mul_lo_u32 v3, v1, s6")
    i("v_lshl_add_u32 v3, v2, 4, v3")
    i("s_lshl_b32 s12, s6, 5")
    i("v_add_u32 v4, s12, v3")
    i("buffer_load_dwordx4 v[8:11], v3, s[40:43], s8 offen")
    i("buffer_load_dwordx4 v[12:15], v4, s[40:43], s8 offen")
    i("v_mul_u32_u24 v5, 144, v1")
    i("v_lshl_add_u32 v5, v2, 4, v5")
    i("s_waitcnt vmcnt(0)")
    i("ds_write_b128 v5, v[8:11]")
    i(f"ds_write_b128 v5, v[12:15] offset:{32*144}")
    i("s_waitcnt lgkmcnt(0)")
    i("s_barrier")
    i(f"v_mul_u32_u24 v6, {8*144}, v2")
    i("v_lshl_add_u32 v6, v1, 1, v6")
    for h in range(2):
        for jj in range(4):
            i(f"ds_read_u16 v{16+4*h+jj}, v6 offset:{(2*jj)*144 + 64*h}")
            i(f"ds_read_u16 v{24+4*h+jj}, v6 offset:{(2*jj+1)*144 + 64*h}")
    i("v_mul_lo_u32 v7, v1, s7")
    i("v_lshl_add_u32 v7, v2, 4, v7")
    i("s_lshl_b32 s12, s7, 5")
    i("v_add_u32 v8, s12, v7")
    i("s_waitcnt lgkmcnt(0)")
    for k in range(8):
        i(f"v_lshl_or_b32 v{16+k}, v{24+k}, 16, v{16+k}")
    i("buffer_store_dwordx4 v[16:19], v7, s[44:47], s10 offen" + SC)
    i("buffer_store_dwordx4 v[20:23], v8, s[44:47], s10 offen" + SC)
    lab("K0_END")
    i("s_endpgm")


class Regs:
    def __init__(self, start):
        self.n = start

    def get(self, cnt=1, align=1):
        self.n = (self.n + align - 1) // align * align
        r = self.n
        self.n += cnt
        return r


def gemm_core(tag, TP, nIter, NST, R, strideP, strideQ, srdP, srdQ,
              sPk, sQk, pre_dma=None, post_dma=None, mid_hook=None):
    TQ = 128
    nPc = TP // 32
    nPf = TP // 32
    nQf = 4
    nF = nPf + nQf
    nD = nPc + 4
    STAGE = (TP + TQ) * 128
    acc = R.get(nPf * nQf * 4, 4)
    F = [R.get(nF * 4, 4), R.get(nF * 4, 4)]
    vPo = [R.get() for _ in range(nPc)]
    vQo = [R.get() for _ in range(4)]
    vt = R.get(4)
    i(f"v_and_b32 v{vt}, 63, v0")
    i(f"v_lshrrev_b32 v{vt+1}, 3, v{vt}")
    i(f"v_and_b32 v{vt+2}, 7, v{vt}")
    i(f"v_xor_b32 v{vt+2}, v{vt+2}, v{vt+1}")
    i(f"v_lshlrev_b32 v{vt+2}, 4, v{vt+2}")
    i(f"s_mul_i32 s63, s60, {nPc*8}")
    i(f"v_add_u32 v{vt+3}, s63, v{vt+1}")
    i(f"s_mov_b32 s63, {strideP}")
    i(f"v_mul_lo_u32 v{vt+3}, v{vt+3}, s63")
    i(f"v_add_u32 v{vt+3}, v{vt+3}, v{vt+2}")
    i(f"v_add_u32 v{vt+3}, s61, v{vt+3}")
    for j in range(nPc):
        d = j * 8 * strideP - (j % 4) * 1024
        i(f"v_add_u32 v{vPo[j]}, 0x{d:x}, v{vt+3}" if d else f"v_mov_b32 v{vPo[j]}, v{vt+3}")
    i(f"s_lshl_b32 s63, s60, 5")
    i(f"v_add_u32 v{vt+3}, s63, v{vt+1}")
    i(f"s_mov_b32 s63, {strideQ}")
    i(f"v_mul_lo_u32 v{vt+3}, v{vt+3}, s63")
    i(f"v_add_u32 v{vt+3}, v{vt+3}, v{vt+2}")
    i(f"v_add_u32 v{vt+3}, s62, v{vt+3}")
    for j in range(4):
        d = j * 8 * strideQ - j * 1024
        i(f"v_add_u32 v{vQo[j]}, 0x{d:x}, v{vt+3}" if d else f"v_mov_b32 v{vQo[j]}, v{vt+3}")
    i(f"s_mul_i32 s64, s60, {nPc*1024}")
    i(f"s_lshl_b32 s65, s60, 12")
    i(f"s_add_u32 s65, s65, {TP*128}")
    i(f"v_and_b32 v{vt+1}, 15, v{vt}")
    i(f"v_lshrrev_b32 v{vt+2}, 4, v{vt}")
    i(f"v_and_b32 v{vt+3}, 7, v{vt}")
    i(f"v_xor_b32 v{vt+2}, v{vt+2}, v{vt+3}")
    i(f"v_lshlrev_b32 v{vt+2}, 4, v{vt+2}")
    i(f"v_lshl_add_u32 v{vt+2}, v{vt+1}, 7, v{vt+2}")
    i(f"s_lshr_b32 s66, s60, 1")
    i(f"s_and_b32 s67, s60, 1")
    i(f"s_mul_i32 s68, s66, {nPf*16*128}")
    i(f"s_lshl_b32 s69, s67, 13")
    i(f"s_add_u32 s69, s69, {TP*128}")
    vB = {}
    vA = {}
    for ks in range(2):
        for op in range(2):
            r = R.get()
            vB[(ks, op)] = r
            vA[(ks, op)] = R.get()
            i(f"v_add_u32 v{r}, s{68+op}, v{vt+2}")
            if ks:
                i(f"v_xor_b32 v{r}, 64, v{r}")

    def dma():
        if pre_dma:
            pre_dma()
        for j in range(nPc):
            if j % 4 == 0:
                i(f"s_add_u32 m0, s84, s64" if j == 0 else f"s_add_u32 m0, m0, 4096")
                i("s_nop 0")
            o = (j % 4) * 1024
            i(f"buffer_load_dwordx4 v{vPo[j]}, s[{srdP}:{srdP+3}], {sPk} offen offset:{o} lds")
        i(f"s_add_u32 m0, s84, s65")
        i("s_nop 0")
        for j in range(4):
            i(f"buffer_load_dwordx4 v{vQo[j]}, s[{srdQ}:{srdQ+3}], {sQk} offen offset:{j*1024} lds")
        if post_dma:
            post_dma()
        i(f"s_add_u32 s84, s84, {STAGE}")
        i(f"s_cmp_eq_u32 s84, {NST*STAGE}")
        i(f"s_cselect_b32 s84, 0, s84")

    def frags(ks, sslot):
        f = F[ks]
        for op in range(2):
            i(f"v_add_u32 v{vA[(ks, op)]}, {sslot}, v{vB[(ks, op)]}")
        for op, n, ob in ((0, nPf, 0), (1, nQf, nPf)):
            for k in range(n):
                r = f + (ob + k) * 4
                i(f"ds_read_b128 v[{r}:{r+3}], v{vA[(ks, op)]} offset:{k*2048}")

    def mfmas(ks):
        f = F[ks]
        for p in range(nPf):
            for q in range(nQf):
                a = acc + (p * nQf + q) * 4
                i(f"v_mfma_f32_16x16x32_bf16 v[{a}:{a+3}], v[{f+p*4}:{f+p*4+3}], "
                  f"v[{f+(nPf+q)*4}:{f+(nPf+q)*4+3}], v[{a}:{a+3}]")

    for k in range(nPf * nQf * 4):
        i(f"v_mov_b32 v{acc+k}, 0")
    i("s_mov_b32 s84, 0")
    i("s_mov_b32 s82, 0")
    i(f"s_mov_b32 s83, {STAGE}")
    i("s_mov_b32 s85, 0")
    for st in range(NST - 1):
        dma()
    i(f"s_waitcnt vmcnt({nD*(NST-2)})")
    i("s_barrier")
    stamp(1)
    frags(0, "s82")
    lab(f"LOOP_{tag}")
    frags(1, "s82")
    i(f"s_waitcnt lgkmcnt({nF})")
    mfmas(0)
    i(f"s_waitcnt vmcnt({nD*(NST-3)})")
    i("s_barrier")
    dma()
    frags(0, "s83")
    i("s_mov_b32 s82, s83")
    i(f"s_add_u32 s83, s83, {STAGE}")
    i(f"s_cmp_eq_u32 s83, {NST*STAGE}")
    i(f"s_cselect_b32 s83, 0, s83")
    i(f"s_waitcnt lgkmcnt({nF})")
    mfmas(1)
    i("s_add_u32 s85, s85, 1")
    i(f"s_cmp_lt_u32 s85, {nIter}")
    i(f"s_cbranch_scc1 LOOP_{tag}")
    i("s_waitcnt vmcnt(0) lgkmcnt(0)")
    i("s_nop 7")
    i("s_nop 7")
    stamp(2)
    return dict(acc=acc, nPf=nPf, nQf=nQf, vt=vt, F=F)


def wave_id():
    i("v_lshrrev_b32 v1, 6, v0")
    i("s_nop 0")
    i("v_readfirstlane_b32 s60, v1")


def k1_epilogue(tag, c, TP, R, srdO, s_out_base, out_stride, relu):
    acc, nPf, nQf, vt = c["acc"], c["nPf"], c["nQf"], c["vt"]
    RS = TP * 2 + 16
    i("s_barrier")
    i(f"v_and_b32 v{vt}, 63, v0")
    i(f"v_and_b32 v{vt+1}, 15, v{vt}")
    i(f"v_lshrrev_b32 v{vt+2}, 4, v{vt}")
    i(f"s_lshl_b32 s63, s67, 6")
    i(f"v_add_u32 v{vt+1}, s63, v{vt+1}")
    i(f"v_mul_u32_u24 v{vt+1}, {RS}, v{vt+1}")
    i(f"v_lshl_add_u32 v{vt+1}, v{vt+2}, 3, v{vt+1}")
    i(f"s_mul_i32 s63, s66, {TP}")
    i(f"v_add_u32 v{vt+1}, s63, v{vt+1}")
    t0 = c["F"][0]
    for p in range(nPf):
        for q in range(nQf):
            a = acc + (p * nQf + q) * 4
            if relu:
                for r in range(4):
                    i(f"v_max_f32 v{a+r}, 0, v{a+r}")
            else:
                for r in range(4):
                    i(f"v_mul_f32 v{a+r}, s70, v{a+r}")
            i(f"v_cvt_pk_bf16_f32 v{t0}, v{a}, v{a+1}")
            i(f"v_cvt_pk_bf16_f32 v{t0+1}, v{a+2}, v{a+3}")
            i(f"ds_write_b64 v{vt+1}, v[{t0}:{t0+1}] offset:{q*16*RS + p*32}")
    i("s_waitcnt lgkmcnt(0)")
    i("s_barrier")
    if TP == 128:
        lpr, nit, rows_per = 16, 8, 16
    else:
        lpr, nit, rows_per = 32, 16, 8
    sh = 4 if lpr == 16 else 5
    i(f"v_and_b32 v{vt+1}, {lpr-1}, v0")
    i(f"v_lshrrev_b32 v{vt+2}, {sh}, v0")
    i(f"v_mul_u32_u24 v{vt+3}, {RS}, v{vt+2}")
    i(f"v_lshl_add_u32 v{vt+3}, v{vt+1}, 4, v{vt+3}")
    i(f"s_mov_b32 s63, {out_stride}")
    i(f"v_mul_lo_u32 v{vt+2}, v{vt+2}, s63")
    i(f"v_lshl_add_u32 v{vt+2}, v{vt+1}, 4, v{vt+2}")
    if lpr == 32:
        i(f"v_cmp_gt_u32 vcc, {TP*2//16}, v{vt+1}")
        i("s_and_saveexec_b64 s[72:73], vcc")
    B = 8
    for it0 in range(0, nit, B):
        for it in range(it0, it0 + B):
            r = acc + (it - it0) * 4
            i(f"ds_read_b128 v[{r}:{r+3}], v{vt+3} offset:{it*rows_per*RS}")
        for it in range(it0, it0 + B):
            r = acc + (it - it0) * 4
            i(f"s_waitcnt lgkmcnt({B-1-(it-it0)})")
            i(f"s_add_u32 s63, {s_out_base}, {it*rows_per*out_stride}")
            i(f"buffer_store_dwordx4 v[{r}:{r+3}], v{vt+2}, s[{srdO}:{srdO+3}], s63 offen{SC}")
        if it0 + B < nit:
            i("s_waitcnt vmcnt(0)")
    if lpr == 32:
        i("s_mov_b64 exec, s[72:73]")


def gen_k1():
    kernel_header("k1_gemm1_kernel")
    i("s_cmpk_ge_u32 s2, 256")
    i("s_cbranch_scc1 K1_END")
    load_args()
    wave_id()
    stamp(0)
    i("s_and_b32 s4, s2, 7")
    i("s_lshr_b32 s5, s2, 3")
    i("s_and_b32 s6, s5, 1")
    i("s_lshl_add_u32 s6, s4, s6" if False else "s_lshl_b32 s4, s4, 1")
    i("s_add_u32 s6, s4, s6")
    i("s_lshr_b32 s7, s5, 2")
    i("s_bitcmp1_b32 s5, 1")
    i("s_waitcnt lgkmcnt(0)")
    i("s_cbranch_scc1 K1_H")
    srd(40, 36, 37, WS_XN, 2048 * 1024)
    i("s_cmp_lt_u32 s7, 4")
    i("s_cselect_b32 s44, s22, s24")
    i("s_cselect_b32 s45, s23, s25")
    i("s_mov_b32 s46, 0x80000")
    i("s_mov_b32 s47, 0x00020000")
    i("s_cselect_b32 s70, 0x3f800000, 0xbf800000")
    i("s_cselect_b32 s71, 0, 4096")
    srd(48, 36, 37, WS_BT, 512 * BT_STRIDE)
    i("s_lshl_b32 s61, s6, 17")
    i("s_and_b32 s8, s7, 3")
    i("s_lshl_b32 s62, s8, 17")
    i(f"s_mul_i32 s9, s8, {128*BT_STRIDE}")
    i("s_add_u32 s9, s9, s71")
    i("s_lshl_b32 s10, s6, 8")
    i("s_add_u32 s9, s9, s10")
    i("s_mov_b32 s11, 0")

    def post():
        i("s_add_u32 s11, s11, 128")
        i("s_cmp_ge_u32 s11, 1024")
        i("s_cselect_b32 s11, 0x40000000, s11")
    R = Regs(2)
    c = gemm_core("ab", 128, 8, 4, R, 1024, 1024, 40, 44, "s11", "s11", post_dma=post)
    k1_epilogue("ab", c, 128, R, 48, "s9", BT_STRIDE, relu=False)
    vg = R.n
    if STAMP:
        i("s_waitcnt vmcnt(0)")
    stamp(3)
    stamp_flush(1)
    i("s_endpgm")
    lab("K1_H")
    srd(40, 36, 37, WS_W1T, 1792 * 1024)
    srd(44, 36, 37, WS_XN, 2048 * 1024)
    srd(48, 36, 37, WS_H, 2048 * 4096)
    i(f"s_mul_i32 s61, s7, {224*1024}")
    i("s_lshl_b32 s62, s6, 17")
    i("s_lshl_b32 s9, s6, 19")
    i(f"s_mul_i32 s10, s7, 448")
    i("s_add_u32 s9, s9, s10")
    i("s_mov_b32 s11, 0")
    R = Regs(2)
    c = gemm_core("h", 224, 8, 3, R, 1024, 1024, 40, 44, "s11", "s11", post_dma=post)
    k1_epilogue("h", c, 224, R, 48, "s9", 4096, relu=True)
    vg = max(vg, R.n)
    if STAMP:
        i("s_waitcnt vmcnt(0)")
    stamp(3)
    stamp_flush(1)
    lab("K1_END")
    i("s_endpgm")
    return vg


def gen_k2():
    kernel_header("k2_gemm2_kernel")
    i("s_cmpk_ge_u32 s2, 256")
    i("s_cbranch_scc1 K2_END")
    load_args()
    wave_id()
    stamp(0)
    i("s_and_b32 s4, s2, 7")
    i("s_lshr_b32 s5, s2, 3")
    i("s_lshr_b32 s6, s4, 1")
    i("s_and_b32 s7, s4, 1")
    i("s_lshl_b32 s7, s7, 3")
    i("s_lshr_b32 s8, s5, 2")
    i("s_add_u32 s7, s7, s8")
    i("s_and_b32 s8, s5, 3")
    i("s_lshl_b32 s9, s7, 2")
    i("s_add_u32 s9, s9, s8")
    i("s_waitcnt lgkmcnt(0)")
    srd(40, 36, 37, WS_BT, 512 * BT_STRIDE)
    i("s_mul_i32 s10, s6, 23")
    i("s_lshl_b32 s11, s10, 7")
    i("s_and_b32 s12, s10, 31")
    i("s_lshl_b32 s12, s12, 7")
    i(f"s_add_u32 s14, s36, 0x{WS_H:x}")
    i("s_addc_u32 s15, s37, 0")
    i("s_cmp_ge_u32 s10, 32")
    i("s_cselect_b32 s44, s20, s18")
    i("s_cselect_b32 s45, s21, s19")
    i("s_cmp_ge_u32 s10, 64")
    i("s_cselect_b32 s44, s14, s44")
    i("s_cselect_b32 s45, s15, s45")
    i("s_mov_b32 s46, 0x800000")
    i("s_mov_b32 s47, 0x00020000")
    srd(48, 32, 33, 0, 2048 * 1024)
    srd(52, 16, 17, 0, 2048 * 1024)
    srd(56, 36, 37, WS_PART, 64 * 3 * 65536)
    srd(76, 36, 37, WS_CNT, CNT_BYTES)
    i(f"s_mul_i32 s61, s8, {128*BT_STRIDE}")
    i("s_lshl_b32 s62, s7, 19")

    i("s_add_u32 s86, s10, 23")

    def post():
        i("s_add_u32 s11, s11, 128")
        i("s_add_u32 s12, s12, 128")
        i("s_add_u32 s10, s10, 1")
        i("s_cmp_eq_u32 s10, 32")
        i("s_cselect_b32 s44, s20, s44")
        i("s_cselect_b32 s45, s21, s45")
        i("s_cselect_b32 s12, 0, s12")
        i("s_cmp_eq_u32 s10, 64")
        i("s_cselect_b32 s44, s14, s44")
        i("s_cselect_b32 s45, s15, s45")
        i("s_cselect_b32 s12, 0, s12")
        i("s_cmp_ge_u32 s10, s86")
        i("s_cselect_b32 s12, 0x40000000, s12")
        i("s_cselect_b32 s11, 0x40000000, s11")
    R = Regs(2)
    c = gemm_core("k2", 128, 23, 4, R, BT_STRIDE, 4096, 40, 44, "s11", "s12", post_dma=post)
    acc, vt = c["acc"], c["vt"]
    F0 = c["F"][0]
    i("s_barrier")
    i("s_lshl_b32 s13, s9, 7")
    i("s_cmp_lg_u32 s60, 0")
    i("s_cbranch_scc1 K2_T1")
    i("s_mov_b64 exec, 1")
    i(f"v_mov_b32 v{vt}, s13")
    i(f"v_mov_b32 v{vt+1}, 1")
    i(f"buffer_atomic_add v{vt+1}, v{vt}, s[76:79], 0 offen sc0 sc1")
    i("s_waitcnt vmcnt(0)")
    i(f"v_mov_b32 v{vt}, 0")
    i(f"ds_write_b32 v{vt}, v{vt+1}")
    i("s_waitcnt lgkmcnt(0)")
    i("s_mov_b64 exec, -1")
    lab("K2_T1")
    i("s_barrier")
    i(f"v_mov_b32 v{vt}, 0")
    i(f"ds_read_b32 v{vt+1}, v{vt}")
    i("s_waitcnt lgkmcnt(0)")
    i(f"v_readfirstlane_b32 s74, v{vt+1}")
    i("s_and_b32 s74, s74, 0xffff")
    stamp(3)
    i(f"v_and_b32 v{vt}, 63, v0")
    i(f"v_lshlrev_b32 v{vt}, 4, v{vt}")
    i("s_lshl_b32 s75, s60, 14")
    i(f"v_add_u32 v{vt}, s75, v{vt}")
    i("s_mul_i32 s75, s9, 3")
    i("s_cmp_ge_u32 s74, 3")
    i("s_cbranch_scc1 K2_LAST")
    i("s_add_u32 s75, s75, s74")
    i("s_lshl_b32 s75, s75, 16")
    for r in range(16):
        if r % 4 == 0 and r:
            i("s_add_u32 s75, s75, 4096")
        i(f"buffer_store_dwordx4 v[{acc+4*r}:{acc+4*r+3}], v{vt}, s[56:59], s75 offen offset:{(r%4)*1024} sc0 sc1")
    i("s_waitcnt vmcnt(0)")
    i("s_barrier")
    i("s_cmp_lg_u32 s60, 0")
    i("s_cbranch_scc1 K2_END")
    i("s_mov_b64 exec, 1")
    i(f"v_mov_b32 v{vt}, s13")
    i(f"v_mov_b32 v{vt+1}, 0x10000")
    i(f"buffer_atomic_add v{vt+1}, v{vt}, s[76:79], 0 offen sc1")
    if STAMP:
        i("s_waitcnt vmcnt(0)")
        i("s_mov_b64 exec, -1")
        stamp(5)
        i("s_mov_b64 s[96:97], 0")
        stamp_flush(2)
    i("s_endpgm")
    lab("K2_LAST")
    i("s_lshl_b32 s75, s75, 16")
    i("s_cmp_lg_u32 s60, 0")
    i("s_cbranch_scc1 K2_L1")
    i("s_mov_b64 exec, 1")
    i(f"v_mov_b32 v{vt+1}, s13")
    lab("K2_POLL")
    i(f"buffer_load_dword v{vt+2}, v{vt+1}, s[76:79], 0 offen sc0 sc1")
    i("s_waitcnt vmcnt(0)")
    i(f"v_readfirstlane_b32 s74, v{vt+2}")
    i("s_lshr_b32 s74, s74, 16")
    i("s_cmp_ge_u32 s74, 3")
    i("s_cbranch_scc1 K2_PD")
    i("s_sleep 2")
    i("s_branch K2_POLL")
    lab("K2_PD")
    i("s_mov_b64 exec, -1")
    lab("K2_L1")
    i("s_barrier")
    stamp(4)
    PB0 = F0
    PB = R.get(64, 4)
    XB = R.get(32, 4)

    def pload(dst, first):
        for r in range(16):
            if r == 0 and not first:
                i(f"s_add_u32 s75, s75, {65536-12288}")
            elif r % 4 == 0 and r:
                i("s_add_u32 s75, s75, 4096")
            d = dst + r * 4
            i(f"buffer_load_dwordx4 v[{d}:{d+3}], v{vt}, s[56:59], s75 offen offset:{(r%4)*1024} sc0 sc1")

    def padd(src, cnt0):
        for r in range(16):
            i(f"s_waitcnt vmcnt({cnt0 - r})")
            d = src + r * 4
            for k in range(4):
                i(f"v_add_f32 v{acc+4*r+k}, v{acc+4*r+k}, v{d+k}")
    pload(PB0, True)
    pload(PB, False)
    i(f"v_lshrrev_b32 v{vt+1}, 4, v0")
    i(f"v_and_b32 v{vt+2}, 15, v0")
    i(f"v_lshlrev_b32 v{vt+3}, 10, v{vt+1}")
    i(f"v_lshl_add_u32 v{vt+3}, v{vt+2}, 4, v{vt+3}")
    i("s_lshl_b32 s80, s7, 17")
    i("s_lshl_b32 s81, s8, 8")
    i("s_add_u32 s80, s80, s81")
    i("s_mov_b32 s81, s80")
    for it in range(8):
        i(f"buffer_load_dwordx4 v[{XB+4*it}:{XB+4*it+3}], v{vt+3}, s[52:55], s81 offen")
        i("s_add_u32 s81, s81, 16384")
    padd(PB0, 39)
    pload(PB0, False)
    padd(PB, 39)
    padd(PB0, 15)
    RS = 528
    T = F0
    i(f"v_and_b32 v{T}, 63, v0")
    i(f"v_and_b32 v{T+1}, 15, v{T}")
    i(f"v_lshrrev_b32 v{T+2}, 4, v{T}")
    i("s_lshl_b32 s63, s67, 6")
    i(f"v_add_u32 v{T+1}, s63, v{T+1}")
    i(f"v_mul_u32_u24 v{T+1}, {RS}, v{T+1}")
    i(f"v_lshl_add_u32 v{T+1}, v{T+2}, 4, v{T+1}")
    i("s_lshl_b32 s63, s66, 8")
    i(f"v_add_u32 v{T+1}, s63, v{T+1}")
    for p in range(4):
        for q in range(4):
            a = acc + (p * 4 + q) * 4
            i(f"ds_write_b128 v{T+1}, v[{a}:{a+3}] offset:{q*16*RS + p*64}")
    i("s_waitcnt lgkmcnt(0)")
    i("s_barrier")
    i(f"v_mul_u32_u24 v{T}, {RS}, v{vt+1}")
    i(f"v_lshl_add_u32 v{T}, v{vt+2}, 5, v{T}")
    for it in range(8):
        d = PB + it * 8
        i(f"ds_read_b128 v[{d}:{d+3}], v{T} offset:{it*16*RS}")
        i(f"ds_read_b128 v[{d+4}:{d+7}], v{T} offset:{it*16*RS+16}")
    i("s_waitcnt vmcnt(0)")
    for it in range(8):
        d = PB + it * 8
        i(f"s_waitcnt lgkmcnt({14-2*it})")
        for k in range(4):
            x = XB + it * 4 + k
            i(f"v_lshlrev_b32 v{T+2}, 16, v{x}")
            i(f"v_and_b32 v{T+3}, 0xffff0000, v{x}")
            i(f"v_add_f32 v{d+2*k}, v{d+2*k}, v{T+2}")
            i(f"v_add_f32 v{d+2*k+1}, v{d+2*k+1}, v{T+3}")
            i(f"v_cvt_pk_bf16_f32 v{x}, v{d+2*k}, v{d+2*k+1}")
        i(f"buffer_store_dwordx4 v[{XB+4*it}:{XB+4*it+3}], v{vt+3}, s[48:51], s80 offen")
        i("s_add_u32 s80, s80, 16384")
    if STAMP:
        i("s_waitcnt vmcnt(0)")
    stamp(5)
    stamp_flush(2)
    lab("K2_END")
    i("s_endpgm")
    return R.n


def main():
    e("; Kernarg layout (88 bytes, ptrs only, base s[0:1]):")
    e("; @launch kernel=k0_prep_kernel grid=(576,1,1) block=(256,1,1) lds=9216")
    e("; @launch kernel=k1_gemm1_kernel grid=(256,1,1) block=(256,1,1) lds=135168")
    e("; @launch kernel=k2_gemm2_kernel grid=(256,1,1) block=(256,1,1) lds=131072")
    e('.amdgcn_target "amdgcn-amd-amdhsa--gfx950"')
    e(".text")
    gen_k0()
    v1 = gen_k1()
    v2 = gen_k2()
    e('.section .rodata,"a"')
    e(".p2align 6")
    kernel_desc("k0_prep_kernel", 64)
    e(".p2align 6")
    kernel_desc("k1_gemm1_kernel", v1)
    e(".p2align 6")
    kernel_desc("k2_gemm2_kernel", v2)
    open(OUT, "w").write("\n".join(L) + "\n")
    print("vgprs", v1, v2, "lines", len(L))


main()
```

```python
import sys

NAME = "parallel_sum__spectral_fnet__dense_activation_relu__prompt"
OUT = f"cdna_kernels/{NAME}.s"
if len(sys.argv) > 1 and sys.argv[1] == "stamp":
    OUT = f"diag/{NAME}.s"
if len(sys.argv) > 2:
    OUT = sys.argv[2]

WS_XN = 0x0
WS_W1T = 0x200000
WS_BT = 0x400000
BT_STRIDE = 11776
WS_H = 0xA00000
WS_PART = 0x3000000
WS_CNT = 0x1E00000
CNT_BYTES = 32768

L = []
import os
SC = os.environ.get("SC", " sc0 sc1")


def e(s=""):
    L.append(s)


def i(s):
    L.append("    " + s)


def lab(s):
    L.append(s + ":")


def load_args():
    i("s_load_dwordx16 s[16:31], s[0:1], 0")
    i("s_load_dwordx4 s[32:35], s[0:1], 64")
    i("s_load_dwordx2 s[36:37], s[0:1], 80")


def srd(d, lo, hi, off, nbytes):
    if off:
        i(f"s_add_u32 s{d}, s{lo}, 0x{off:x}")
        i(f"s_addc_u32 s{d+1}, s{hi}, 0")
    else:
        i(f"s_mov_b32 s{d}, s{lo}")
        i(f"s_mov_b32 s{d+1}, s{hi}")
    i(f"s_mov_b32 s{d+2}, 0x{nbytes:x}")
    i(f"s_mov_b32 s{d+3}, 0x00020000")


STAMP = len(sys.argv) > 1 and sys.argv[1] == "stamp"
WS_DBG = 0x2000000


def stamp(k):
    if STAMP:
        i(f"s_memrealtime s[{88+2*k}:{89+2*k}]")
        i("s_waitcnt lgkmcnt(0)")


SFN = [0]


def stamp_flush(kidx):
    if not STAMP:
        return
    SFN[0] += 1
    lbl = f"SF_{SFN[0]}"
    i("s_waitcnt lgkmcnt(0)")
    i("s_cmp_lg_u32 s60, 0")
    i(f"s_cbranch_scc1 {lbl}")
    i("s_mov_b64 exec, 1")
    i(f"s_add_u32 s4, s36, 0x{WS_DBG + kidx*0x10000:x}")
    i("s_addc_u32 s5, s37, 0")
    i("s_mov_b32 s6, 0x10000")
    i("s_mov_b32 s7, 0x00020000")
    i("s_lshl_b32 s8, s2, 6")
    i("v_mov_b32 v1, s8")
    for k in range(6):
        i(f"v_mov_b32 v2, s{88+2*k}")
        i(f"v_mov_b32 v3, s{89+2*k}")
        i(f"buffer_store_dwordx2 v[2:3], v1, s[4:7], 0 offen offset:{8*k}")
        i("s_nop 1")
    lab(lbl)


def kernel_header(name):
    e(f".globl {name}")
    e(".p2align 8")
    e(f".type {name},@function")
    lab(name)


def kernel_desc(name, vgpr, sgpr=102):
    acc = (vgpr + 3) // 4 * 4
    e(f".amdhsa_kernel {name}")
    e(f"  .amdhsa_next_free_vgpr {vgpr}")
    e(f"  .amdhsa_next_free_sgpr {sgpr}")
    e(f"  .amdhsa_accum_offset {acc}")
    e("  .amdhsa_group_segment_fixed_size 0")
    e("  .amdhsa_kernarg_size 88")
    e("  .amdhsa_user_sgpr_count 2")
    e("  .amdhsa_user_sgpr_kernarg_segment_ptr 1")
    e("  .amdhsa_system_sgpr_workgroup_id_x 1")
    e(".end_amdhsa_kernel")


def gen_k0():
    kernel_header("k0_prep_kernel")
    i("s_cmpk_ge_u32 s2, 576")
    i("s_cbranch_scc1 K0_END")
    load_args()
    i("s_cmpk_ge_u32 s2, 128")
    i("s_cbranch_scc1 K0_TR")
    i("s_waitcnt lgkmcnt(0)")
    srd(40, 16, 17, 0, 2048 * 1024)
    srd(44, 36, 37, WS_XN, 2048 * 1024)
    srd(48, 36, 37, WS_CNT, CNT_BYTES)
    i("s_cmp_lg_u32 s2, 0")
    i("s_cbranch_scc1 K0_LN")
    i("v_lshlrev_b32 v1, 4, v0")
    for r in range(4):
        i(f"v_mov_b32 v{4+r}, 0")
    for k in range(CNT_BYTES // 4096):
        i(f"buffer_store_dwordx4 v[4:7], v1, s[48:51], 0 offen offset:0" if k == 0 else
          f"buffer_store_dwordx4 v[4:7], v1, s[48:51], s52 offen")
        i(f"s_mov_b32 s52, {4096*(k+1)}")
    lab("K0_LN")
    i("v_lshrrev_b32 v1, 4, v0")
    i("s_lshl_b32 s3, s2, 4")
    i("v_add_u32 v1, s3, v1")
    i("v_lshlrev_b32 v1, 10, v1")
    i("v_and_b32 v2, 15, v0")
    i("v_lshl_add_u32 v1, v2, 4, v1")
    for c in range(4):
        i(f"buffer_load_dwordx4 v[{4+4*c}:{7+4*c}], v1, s[40:43], 0 offen offset:{256*c}")
    i("s_waitcnt vmcnt(0)")
    for k in range(16):
        i(f"v_lshlrev_b32 v{20+2*k}, 16, v{4+k}")
        i(f"v_and_b32 v{21+2*k}, 0xffff0000, v{4+k}")
    i("v_add_f32 v52, v20, v21")
    for k in range(2, 32):
        i(f"v_add_f32 v52, v52, v{20+k}")

    def reduce16(r, t):
        for mod in ["quad_perm:[1,0,3,2]", "quad_perm:[2,3,0,1]", "row_half_mirror", "row_mirror"]:
            i("s_nop 1")
            i(f"v_add_f32_dpp v{t}, v{r}, v{r} {mod} row_mask:0xf bank_mask:0xf")
            i(f"v_mov_b32 v{r}, v{t}")
    reduce16(52, 53)
    i("v_mul_f32 v52, 0x3b000000, v52")
    i("v_sub_f32 v54, v20, v52")
    i("v_mul_f32 v55, v54, v54")
    for k in range(1, 32):
        i(f"v_sub_f32 v54, v{20+k}, v52")
        i(f"v_fmac_f32 v55, v54, v54")
    reduce16(55, 53)
    i("v_mul_f32 v55, 0x3b000000, v55")
    i("v_cvt_pk_bf16_f32 v52, v52, v52")
    i("v_and_b32 v52, 0xffff0000, v52")
    i("v_cvt_pk_bf16_f32 v55, v55, v55")
    i("v_and_b32 v55, 0xffff0000, v55")
    i("v_add_f32 v55, 0x3727c5ac, v55")
    i("v_cvt_pk_bf16_f32 v55, v55, v55")
    i("v_and_b32 v55, 0xffff0000, v55")
    i("v_sqrt_f32 v55, v55")
    i("s_nop 0")
    i("v_cvt_pk_bf16_f32 v55, v55, v55")
    i("v_and_b32 v55, 0xffff0000, v55")
    i("v_rcp_f32 v56, v55")
    i("s_nop 0")
    for k in range(16):
        a, b = 20 + 2 * k, 21 + 2 * k
        i(f"v_sub_f32 v{a}, v{a}, v52")
        i(f"v_sub_f32 v{b}, v{b}, v52")
        i(f"v_cvt_pk_bf16_f32 v57, v{a}, v{b}")
        i(f"v_lshlrev_b32 v{a}, 16, v57")
        i(f"v_and_b32 v{b}, 0xffff0000, v57")
        i(f"v_mul_f32 v58, v{a}, v56")
        i(f"v_mul_f32 v59, v{b}, v56")
        i(f"v_fma_f32 v{a}, -v58, v55, v{a}")
        i(f"v_fma_f32 v{b}, -v59, v55, v{b}")
        i(f"v_fmac_f32 v58, v{a}, v56")
        i(f"v_fmac_f32 v59, v{b}, v56")
        i(f"v_cvt_pk_bf16_f32 v{4+k}, v58, v59")
    for c in range(4):
        i(f"buffer_store_dwordx4 v[{4+4*c}:{7+4*c}], v1, s[44:47], 0 offen offset:{256*c}{SC}")
    i("s_endpgm")

    lab("K0_TR")
    i("s_waitcnt lgkmcnt(0)")
    i("s_cmpk_ge_u32 s2, 352")
    i("s_cbranch_scc1 K0_TR2")
    i("s_sub_u32 s3, s2, 128")
    i("s_mul_hi_u32 s4, s3, 0x924924a")
    i("s_mul_i32 s5, s4, 28")
    i("s_sub_u32 s5, s3, s5")
    srd(40, 28, 29, 0, 512 * 3584)
    srd(44, 36, 37, WS_W1T, 1792 * 1024)
    i("s_mov_b32 s6, 3584")
    i("s_mov_b32 s7, 1024")
    i("s_branch K0_TRC")
    lab("K0_TR2")
    i("s_sub_u32 s3, s2, 352")
    i("s_lshr_b32 s4, s3, 3")
    i("s_and_b32 s5, s3, 7")
    srd(40, 30, 31, 0, 1792 * 1024)
    srd(44, 36, 37, WS_BT + 4096 * 2, 512 * BT_STRIDE - 4096 * 2)
    i("s_mov_b32 s6, 1024")
    i(f"s_mov_b32 s7, {BT_STRIDE}")
    lab("K0_TRC")
    i("s_lshl_b32 s8, s4, 6")
    i("s_mul_i32 s8, s8, s6")
    i("s_lshl_b32 s9, s5, 7")
    i("s_add_u32 s8, s8, s9")
    i("s_lshl_b32 s10, s5, 6")
    i("s_mul_i32 s10, s10, s7")
    i("s_lshl_b32 s11, s4, 7")
    i("s_add_u32 s10, s10, s11")
    i("v_lshrrev_b32 v1, 3, v0")
    i("v_and_b32 v2, 7, v0")
    i("v_mul_lo_u32 v3, v1, s6")
    i("v_lshl_add_u32 v3, v2, 4, v3")
    i("s_lshl_b32 s12, s6, 5")
    i("v_add_u32 v4, s12, v3")
    i("buffer_load_dwordx4 v[8:11], v3, s[40:43], s8 offen")
    i("buffer_load_dwordx4 v[12:15], v4, s[40:43], s8 offen")
    i("v_mul_u32_u24 v5, 144, v1")
    i("v_lshl_add_u32 v5, v2, 4, v5")
    i("s_waitcnt vmcnt(0)")
    i("ds_write_b128 v5, v[8:11]")
    i(f"ds_write_b128 v5, v[12:15] offset:{32*144}")
    i("s_waitcnt lgkmcnt(0)")
    i("s_barrier")
    i(f"v_mul_u32_u24 v6, {8*144}, v2")
    i("v_lshl_add_u32 v6, v1, 1, v6")
    for h in range(2):
        for jj in range(4):
            i(f"ds_read_u16 v{16+4*h+jj}, v6 offset:{(2*jj)*144 + 64*h}")
            i(f"ds_read_u16 v{24+4*h+jj}, v6 offset:{(2*jj+1)*144 + 64*h}")
    i("v_mul_lo_u32 v7, v1, s7")
    i("v_lshl_add_u32 v7, v2, 4, v7")
    i("s_lshl_b32 s12, s7, 5")
    i("v_add_u32 v8, s12, v7")
    i("s_waitcnt lgkmcnt(0)")
    for k in range(8):
        i(f"v_lshl_or_b32 v{16+k}, v{24+k}, 16, v{16+k}")
    i("buffer_store_dwordx4 v[16:19], v7, s[44:47], s10 offen" + SC)
    i("buffer_store_dwordx4 v[20:23], v8, s[44:47], s10 offen" + SC)
    lab("K0_END")
    i("s_endpgm")


class Regs:
    def __init__(self, start):
        self.n = start

    def get(self, cnt=1, align=1):
        self.n = (self.n + align - 1) // align * align
        r = self.n
        self.n += cnt
        return r


def gemm_loader(tag, TP, nIter, NST, early, strideP, strideQ, srdP, srdQ, sPk, sQk, post_dma):
    nPc = TP // 32
    nD = nPc + 4
    STAGE = (TP + 128) * 128
    vPo = [8 + j for j in range(nPc)]
    vQo = [8 + nPc + j for j in range(4)]
    vt = 2
    i(f"v_and_b32 v{vt}, 63, v0")
    i(f"v_lshrrev_b32 v{vt+1}, 3, v{vt}")
    i(f"v_and_b32 v{vt+2}, 7, v{vt}")
    i(f"v_xor_b32 v{vt+2}, v{vt+2}, v{vt+1}")
    i(f"v_lshlrev_b32 v{vt+2}, 4, v{vt+2}")
    i(f"s_mul_i32 s63, s87, {nPc*8}")
    i(f"v_add_u32 v{vt+3}, s63, v{vt+1}")
    i(f"s_mov_b32 s63, {strideP}")
    i(f"v_mul_lo_u32 v{vt+3}, v{vt+3}, s63")
    i(f"v_add_u32 v{vt+3}, v{vt+3}, v{vt+2}")
    i(f"v_add_u32 v{vt+3}, s61, v{vt+3}")
    for j in range(nPc):
        d = j * 8 * strideP - (j % 4) * 1024
        i(f"v_add_u32 v{vPo[j]}, 0x{d:x}, v{vt+3}" if d else f"v_mov_b32 v{vPo[j]}, v{vt+3}")
    i(f"s_lshl_b32 s63, s87, 5")
    i(f"v_add_u32 v{vt+3}, s63, v{vt+1}")
    i(f"s_mov_b32 s63, {strideQ}")
    i(f"v_mul_lo_u32 v{vt+3}, v{vt+3}, s63")
    i(f"v_add_u32 v{vt+3}, v{vt+3}, v{vt+2}")
    i(f"v_add_u32 v{vt+3}, s62, v{vt+3}")
    for j in range(4):
        d = j * 8 * strideQ - j * 1024
        i(f"v_add_u32 v{vQo[j]}, 0x{d:x}, v{vt+3}" if d else f"v_mov_b32 v{vQo[j]}, v{vt+3}")
    i(f"s_mul_i32 s64, s87, {nPc*1024}")
    i(f"s_lshl_b32 s65, s87, 12")
    i(f"s_add_u32 s65, s65, {TP*128}")

    def dma():
        for j in range(nPc):
            if j % 4 == 0:
                i(f"s_add_u32 m0, s84, s64" if j == 0 else f"s_add_u32 m0, m0, 4096")
                i("s_nop 0")
            o = (j % 4) * 1024
            i(f"buffer_load_dwordx4 v{vPo[j]}, s[{srdP}:{srdP+3}], {sPk} offen offset:{o} lds")
        i(f"s_add_u32 m0, s84, s65")
        i("s_nop 0")
        for j in range(4):
            i(f"buffer_load_dwordx4 v{vQo[j]}, s[{srdQ}:{srdQ+3}], {sQk} offen offset:{j*1024} lds")
        post_dma()
        i(f"s_add_u32 s84, s84, {STAGE}")
        i(f"s_cmp_eq_u32 s84, {NST*STAGE}")
        i(f"s_cselect_b32 s84, 0, s84")

    npro = NST if early else NST - 1
    i("s_mov_b32 s84, 0")
    for st in range(npro):
        dma()
    i(f"s_waitcnt vmcnt({nD*(npro-1)})")
    i("s_barrier")
    nsteady = nIter - npro
    i("s_mov_b32 s85, 0")
    lab(f"LLOOP_{tag}")
    i(f"s_waitcnt vmcnt({nD*(npro-2)})")
    i("s_barrier")
    if early:
        i("s_barrier")
    dma()
    i("s_add_u32 s85, s85, 1")
    i(f"s_cmp_lt_u32 s85, {nsteady}")
    i(f"s_cbranch_scc1 LLOOP_{tag}")
    for it in range(nsteady, nIter):
        allowed = max(nIter - 1 - (it + 1), 0)
        i(f"s_waitcnt vmcnt({nD*allowed})")
        i("s_barrier")
        if early:
            i("s_barrier")


def gemm_compute(tag, TP, nIter, NST, early, R):
    nPf = TP // 32
    nQf = 4
    nF = nPf + nQf
    STAGE = (TP + 128) * 128
    acc = R.get(nPf * nQf * 4, 4)
    F = [R.get(nF * 4, 4), R.get(nF * 4, 4)]
    vt = R.get(4)
    i(f"v_and_b32 v{vt}, 63, v0")
    i(f"v_and_b32 v{vt+1}, 15, v{vt}")
    i(f"v_lshrrev_b32 v{vt+2}, 4, v{vt}")
    i(f"v_and_b32 v{vt+3}, 7, v{vt}")
    i(f"v_xor_b32 v{vt+2}, v{vt+2}, v{vt+3}")
    i(f"v_lshlrev_b32 v{vt+2}, 4, v{vt+2}")
    i(f"v_lshl_add_u32 v{vt+2}, v{vt+1}, 7, v{vt+2}")
    i(f"s_lshr_b32 s66, s87, 1")
    i(f"s_and_b32 s67, s87, 1")
    i(f"s_mul_i32 s68, s66, {nPf*16*128}")
    i(f"s_lshl_b32 s69, s67, 13")
    i(f"s_add_u32 s69, s69, {TP*128}")
    vB = {}
    vA = {}
    for ks in range(2):
        for op in range(2):
            r = R.get()
            vB[(ks, op)] = r
            vA[(ks, op)] = R.get()
            i(f"v_add_u32 v{r}, s{68+op}, v{vt+2}")
            if ks:
                i(f"v_xor_b32 v{r}, 64, v{r}")

    def frags(ks, sslot):
        f = F[ks]
        for op in range(2):
            i(f"v_add_u32 v{vA[(ks, op)]}, {sslot}, v{vB[(ks, op)]}")
        for op, n, ob in ((0, nPf, 0), (1, nQf, nPf)):
            for k in range(n):
                r = f + (ob + k) * 4
                i(f"ds_read_b128 v[{r}:{r+3}], v{vA[(ks, op)]} offset:{k*2048}")

    def mfmas(ks):
        f = F[ks]
        for p in range(nPf):
            for q in range(nQf):
                a = acc + (p * nQf + q) * 4
                i(f"v_mfma_f32_16x16x32_bf16 v[{a}:{a+3}], v[{f+p*4}:{f+p*4+3}], "
                  f"v[{f+(nPf+q)*4}:{f+(nPf+q)*4+3}], v[{a}:{a+3}]")

    for k in range(nPf * nQf * 4):
        i(f"v_mov_b32 v{acc+k}, 0")
    i("s_mov_b32 s82, 0")
    i(f"s_mov_b32 s83, {STAGE}")
    i("s_mov_b32 s85, 0")
    i("s_barrier")
    stamp(1)
    frags(0, "s82")
    lab(f"LOOP_{tag}")
    frags(1, "s82")
    i(f"s_waitcnt lgkmcnt({nF})")
    mfmas(0)
    i("s_barrier")
    frags(0, "s83")
    i("s_mov_b32 s82, s83")
    i(f"s_add_u32 s83, s83, {STAGE}")
    i(f"s_cmp_eq_u32 s83, {NST*STAGE}")
    i(f"s_cselect_b32 s83, 0, s83")
    i(f"s_waitcnt lgkmcnt({nF})")
    if early:
        i("s_barrier")
    mfmas(1)
    i("s_add_u32 s85, s85, 1")
    i(f"s_cmp_lt_u32 s85, {nIter}")
    i(f"s_cbranch_scc1 LOOP_{tag}")
    i("s_waitcnt lgkmcnt(0)")
    i("s_nop 7")
    i("s_nop 7")
    stamp(2)
    return dict(acc=acc, nPf=nPf, nQf=nQf, vt=vt, F=F)


def wave_id():
    i("v_lshrrev_b32 v1, 6, v0")
    i("s_nop 0")
    i("v_readfirstlane_b32 s60, v1")
    i("s_and_b32 s87, s60, 3")


def k1_epilogue(tag, c, TP, R, srdO, s_out_base, out_stride, relu):
    acc, nPf, nQf, vt = c["acc"], c["nPf"], c["nQf"], c["vt"]
    RS = TP * 2 + 16
    i("s_barrier")
    i(f"v_and_b32 v{vt}, 63, v0")
    i(f"v_and_b32 v{vt+1}, 15, v{vt}")
    i(f"v_lshrrev_b32 v{vt+2}, 4, v{vt}")
    i(f"s_lshl_b32 s63, s67, 6")
    i(f"v_add_u32 v{vt+1}, s63, v{vt+1}")
    i(f"v_mul_u32_u24 v{vt+1}, {RS}, v{vt+1}")
    i(f"v_lshl_add_u32 v{vt+1}, v{vt+2}, 3, v{vt+1}")
    i(f"s_mul_i32 s63, s66, {TP}")
    i(f"v_add_u32 v{vt+1}, s63, v{vt+1}")
    t0 = c["F"][0]
    for p in range(nPf):
        for q in range(nQf):
            a = acc + (p * nQf + q) * 4
            if relu:
                for r in range(4):
                    i(f"v_max_f32 v{a+r}, 0, v{a+r}")
            else:
                for r in range(4):
                    i(f"v_mul_f32 v{a+r}, s70, v{a+r}")
            i(f"v_cvt_pk_bf16_f32 v{t0}, v{a}, v{a+1}")
            i(f"v_cvt_pk_bf16_f32 v{t0+1}, v{a+2}, v{a+3}")
            i(f"ds_write_b64 v{vt+1}, v[{t0}:{t0+1}] offset:{q*16*RS + p*32}")
    i("s_waitcnt lgkmcnt(0)")
    i("s_barrier")
    if TP == 128:
        lpr, nit, rows_per = 16, 8, 16
    else:
        lpr, nit, rows_per = 32, 16, 8
    sh = 4 if lpr == 16 else 5
    i(f"v_and_b32 v{vt+1}, {lpr-1}, v0")
    i(f"v_lshrrev_b32 v{vt+2}, {sh}, v0")
    i(f"v_mul_u32_u24 v{vt+3}, {RS}, v{vt+2}")
    i(f"v_lshl_add_u32 v{vt+3}, v{vt+1}, 4, v{vt+3}")
    i(f"s_mov_b32 s63, {out_stride}")
    i(f"v_mul_lo_u32 v{vt+2}, v{vt+2}, s63")
    i(f"v_lshl_add_u32 v{vt+2}, v{vt+1}, 4, v{vt+2}")
    if lpr == 32:
        i(f"v_cmp_gt_u32 vcc, {TP*2//16}, v{vt+1}")
        i("s_and_saveexec_b64 s[72:73], vcc")
    B = 8
    for it0 in range(0, nit, B):
        for it in range(it0, it0 + B):
            r = acc + (it - it0) * 4
            i(f"ds_read_b128 v[{r}:{r+3}], v{vt+3} offset:{it*rows_per*RS}")
        for it in range(it0, it0 + B):
            r = acc + (it - it0) * 4
            i(f"s_waitcnt lgkmcnt({B-1-(it-it0)})")
            i(f"s_add_u32 s63, {s_out_base}, {it*rows_per*out_stride}")
            i(f"buffer_store_dwordx4 v[{r}:{r+3}], v{vt+2}, s[{srdO}:{srdO+3}], s63 offen{SC}")
        if it0 + B < nit:
            i("s_waitcnt vmcnt(0)")
    if lpr == 32:
        i("s_mov_b64 exec, s[72:73]")


def gen_k1():
    kernel_header("k1_gemm1_kernel")
    i("s_cmpk_ge_u32 s2, 256")
    i("s_cbranch_scc1 K1_END")
    load_args()
    wave_id()
    stamp(0)
    i("s_and_b32 s4, s2, 7")
    i("s_lshr_b32 s5, s2, 3")
    i("s_and_b32 s6, s5, 1")
    i("s_lshl_b32 s4, s4, 1")
    i("s_add_u32 s6, s4, s6")
    i("s_lshr_b32 s7, s5, 2")
    i("s_bitcmp1_b32 s5, 1")
    i("s_waitcnt lgkmcnt(0)")
    i("s_cbranch_scc1 K1_H")

    def post():
        i("s_add_u32 s11, s11, 128")
    srd(40, 36, 37, WS_XN, 2048 * 1024)
    i("s_cmp_lt_u32 s7, 4")
    i("s_cselect_b32 s44, s22, s24")
    i("s_cselect_b32 s45, s23, s25")
    i("s_mov_b32 s46, 0x80000")
    i("s_mov_b32 s47, 0x00020000")
    i("s_cselect_b32 s70, 0x3f800000, 0xbf800000")
    i("s_cselect_b32 s71, 0, 4096")
    srd(48, 36, 37, WS_BT, 512 * BT_STRIDE)
    i("s_lshl_b32 s61, s6, 17")
    i("s_and_b32 s8, s7, 3")
    i("s_lshl_b32 s62, s8, 17")
    i(f"s_mul_i32 s9, s8, {128*BT_STRIDE}")
    i("s_add_u32 s9, s9, s71")
    i("s_lshl_b32 s10, s6, 8")
    i("s_add_u32 s9, s9, s10")
    i("s_mov_b32 s11, 0")
    i("s_cmp_ge_u32 s60, 4")
    i("s_cbranch_scc1 K1_AB_LD")
    R = Regs(2)
    c = gemm_compute("ab", 128, 8, 4, False, R)
    k1_epilogue("ab", c, 128, R, 48, "s9", BT_STRIDE, relu=False)
    vg = R.n
    if STAMP:
        i("s_waitcnt vmcnt(0)")
    stamp(3)
    stamp_flush(1)
    i("s_endpgm")
    lab("K1_AB_LD")
    gemm_loader("ab", 128, 8, 4, False, 1024, 1024, 40, 44, "s11", "s11", post)
    i("s_barrier")
    i("s_endpgm")
    lab("K1_H")
    srd(40, 36, 37, WS_W1T, 1792 * 1024)
    srd(44, 36, 37, WS_XN, 2048 * 1024)
    srd(48, 36, 37, WS_H, 2048 * 4096)
    i(f"s_mul_i32 s61, s7, {224*1024}")
    i("s_lshl_b32 s62, s6, 17")
    i("s_lshl_b32 s9, s6, 19")
    i(f"s_mul_i32 s10, s7, 448")
    i("s_add_u32 s9, s9, s10")
    i("s_mov_b32 s11, 0")
    i("s_cmp_ge_u32 s60, 4")
    i("s_cbranch_scc1 K1_H_LD")
    R = Regs(2)
    c = gemm_compute("h", 224, 8, 3, True, R)
    k1_epilogue("h", c, 224, R, 48, "s9", 4096, relu=True)
    vg = max(vg, R.n)
    if STAMP:
        i("s_waitcnt vmcnt(0)")
    stamp(3)
    stamp_flush(1)
    i("s_endpgm")
    lab("K1_H_LD")
    gemm_loader("h", 224, 8, 3, True, 1024, 1024, 40, 44, "s11", "s11", post)
    i("s_barrier")
    lab("K1_END")
    i("s_endpgm")
    return vg


def gen_k2():
    kernel_header("k2_gemm2_kernel")
    i("s_cmpk_ge_u32 s2, 256")
    i("s_cbranch_scc1 K2_END")
    load_args()
    wave_id()
    stamp(0)
    i("s_and_b32 s4, s2, 7")
    i("s_lshr_b32 s5, s2, 3")
    i("s_lshr_b32 s6, s4, 1")
    i("s_and_b32 s7, s4, 1")
    i("s_lshl_b32 s7, s7, 3")
    i("s_lshr_b32 s8, s5, 2")
    i("s_add_u32 s7, s7, s8")
    i("s_and_b32 s8, s5, 3")
    i("s_lshl_b32 s9, s7, 2")
    i("s_add_u32 s9, s9, s8")
    i("s_waitcnt lgkmcnt(0)")
    i("s_cmp_ge_u32 s60, 4")
    i("s_cbranch_scc1 K2_LD")
    srd(48, 32, 33, 0, 2048 * 1024)
    srd(52, 16, 17, 0, 2048 * 1024)
    srd(56, 36, 37, WS_PART, 64 * 16 * 16384)
    srd(76, 36, 37, WS_CNT, CNT_BYTES)
    R = Regs(2)
    c = gemm_compute("k2", 128, 23, 4, False, R)
    acc, vt = c["acc"], c["vt"]
    F0 = c["F"][0]
    XB = R.get(8, 2)
    vo = R.get(1)
    i(f"v_and_b32 v{vt}, 63, v0")
    i(f"v_and_b32 v{vt+1}, 15, v{vt}")
    i(f"v_lshrrev_b32 v{vt+2}, 4, v{vt}")
    i("s_lshl_b32 s70, s7, 7")
    i("s_lshl_b32 s71, s67, 6")
    i("s_add_u32 s70, s70, s71")
    i("s_lshl_b32 s71, s6, 4")
    i("s_add_u32 s70, s70, s71")
    i(f"v_add_u32 v{vt+1}, s70, v{vt+1}")
    i(f"v_lshlrev_b32 v{vt+1}, 10, v{vt+1}")
    i(f"v_lshl_add_u32 v{vt+1}, v{vt+2}, 3, v{vt+1}")
    i("s_lshl_b32 s70, s8, 8")
    i("s_lshl_b32 s71, s66, 7")
    i("s_add_u32 s70, s70, s71")
    i(f"v_add_u32 v{vo}, s70, v{vt+1}")
    for p in range(4):
        i(f"buffer_load_dwordx2 v[{XB+2*p}:{XB+2*p+1}], v{vo}, s[52:55], 0 offen offset:{32*p}")
    i(f"v_lshlrev_b32 v{vt}, 4, v{vt}")
    i("s_lshl_b32 s75, s87, 12")
    i(f"v_add_u32 v{vt}, s75, v{vt}")
    i("s_lshl_b32 s74, s9, 18")
    i("s_lshl_b32 s13, s9, 2")
    i("s_add_u32 s13, s13, s87")
    i("s_lshl_b32 s13, s13, 7")
    for ks in range(4):
        if ks < 3:
            i(f"s_cmp_lg_u32 s6, {ks}")
            i(f"s_cbranch_scc1 K2_T{ks+1}")
        for q in range(4):
            if q == ks:
                continue
            i(f"s_add_u32 s75, s74, {(q*4+ks)*16384}")
            for p in range(4):
                a = acc + (p * 4 + q) * 4
                i(f"buffer_store_dwordx4 v[{a}:{a+3}], v{vt}, s[56:59], s75 offen offset:{p*1024} sc0 sc1")
        i("s_waitcnt vmcnt(0)")
        i("s_mov_b64 exec, 1")
        i(f"v_mov_b32 v{vt+1}, s13")
        i(f"v_mov_b32 v{vt+2}, 1")
        i(f"buffer_atomic_add v{vt+2}, v{vt+1}, s[76:79], 0 offen sc1")
        stamp(3)
        lab(f"K2_POLL{ks}")
        i(f"buffer_load_dword v{vt+2}, v{vt+1}, s[76:79], 0 offen sc0 sc1")
        i("s_waitcnt vmcnt(0)")
        i(f"v_readfirstlane_b32 s73, v{vt+2}")
        i("s_cmp_ge_u32 s73, 4")
        i(f"s_cbranch_scc1 K2_PD{ks}")
        i("s_sleep 1")
        i(f"s_branch K2_POLL{ks}")
        lab(f"K2_PD{ks}")
        i("s_mov_b64 exec, -1")
        stamp(4)
        srcs = [s for s in range(4) if s != ks]
        for n, s in enumerate(srcs):
            i(f"s_add_u32 s75, s74, {(ks*4+s)*16384}")
            for p in range(4):
                d = F0 + (n * 4 + p) * 4
                i(f"buffer_load_dwordx4 v[{d}:{d+3}], v{vt}, s[56:59], s75 offen offset:{p*1024} sc0 sc1")
        i("s_waitcnt vmcnt(0)")
        for p in range(4):
            a = acc + (p * 4 + ks) * 4
            terms = []
            for s in range(4):
                terms.append(a if s == ks else F0 + (srcs.index(s) * 4 + p) * 4)
            for r in range(4):
                i(f"v_add_f32 v{vt+1}, v{terms[0]+r}, v{terms[1]+r}")
                i(f"v_add_f32 v{vt+1}, v{vt+1}, v{terms[2]+r}")
                i(f"v_add_f32 v{a+r}, v{vt+1}, v{terms[3]+r}")
            for h in range(2):
                x = XB + 2 * p + h
                i(f"v_lshlrev_b32 v{vt+1}, 16, v{x}")
                i(f"v_and_b32 v{vt+2}, 0xffff0000, v{x}")
                i(f"v_add_f32 v{a+2*h}, v{a+2*h}, v{vt+1}")
                i(f"v_add_f32 v{a+2*h+1}, v{a+2*h+1}, v{vt+2}")
                i(f"v_cvt_pk_bf16_f32 v{x}, v{a+2*h}, v{a+2*h+1}")
            i(f"buffer_store_dwordx2 v[{XB+2*p}:{XB+2*p+1}], v{vo}, s[48:51], 0 offen offset:{32*p}")
        if STAMP:
            i("s_waitcnt vmcnt(0)")
        stamp(5)
        stamp_flush(2)
        i("s_endpgm")
        if ks < 3:
            lab(f"K2_T{ks+1}")
    lab("K2_LD")
    srd(40, 36, 37, WS_BT, 512 * BT_STRIDE)
    i("s_mul_i32 s10, s6, 23")
    i("s_lshl_b32 s11, s10, 7")
    i("s_and_b32 s12, s10, 31")
    i("s_lshl_b32 s12, s12, 7")
    i(f"s_add_u32 s14, s36, 0x{WS_H:x}")
    i("s_addc_u32 s15, s37, 0")
    i("s_cmp_ge_u32 s10, 32")
    i("s_cselect_b32 s44, s20, s18")
    i("s_cselect_b32 s45, s21, s19")
    i("s_cmp_ge_u32 s10, 64")
    i("s_cselect_b32 s44, s14, s44")
    i("s_cselect_b32 s45, s15, s45")
    i("s_mov_b32 s46, 0x800000")
    i("s_mov_b32 s47, 0x00020000")
    i(f"s_mul_i32 s61, s8, {128*BT_STRIDE}")
    i("s_lshl_b32 s62, s7, 19")

    def post():
        i("s_add_u32 s11, s11, 128")
        i("s_add_u32 s12, s12, 128")
        i("s_add_u32 s10, s10, 1")
        i("s_cmp_eq_u32 s10, 32")
        i("s_cselect_b32 s44, s20, s44")
        i("s_cselect_b32 s45, s21, s45")
        i("s_cselect_b32 s12, 0, s12")
        i("s_cmp_eq_u32 s10, 64")
        i("s_cselect_b32 s44, s14, s44")
        i("s_cselect_b32 s45, s15, s45")
        i("s_cselect_b32 s12, 0, s12")
    gemm_loader("k2", 128, 23, 4, False, BT_STRIDE, 4096, 40, 44, "s11", "s12", post)
    lab("K2_END")
    i("s_endpgm")
    return R.n


def main():
    e("; Kernarg layout (88 bytes, ptrs only, base s[0:1]):")
    e("; @launch kernel=k0_prep_kernel grid=(576,1,1) block=(256,1,1) lds=9216")
    e("; @launch kernel=k1_gemm1_kernel grid=(256,1,1) block=(512,1,1) lds=135168")
    e("; @launch kernel=k2_gemm2_kernel grid=(256,1,1) block=(512,1,1) lds=131072")
    e('.amdgcn_target "amdgcn-amd-amdhsa--gfx950"')
    e(".text")
    gen_k0()
    v1 = gen_k1()
    v2 = gen_k2()
    e('.section .rodata,"a"')
    e(".p2align 6")
    kernel_desc("k0_prep_kernel", 64)
    e(".p2align 6")
    kernel_desc("k1_gemm1_kernel", v1)
    e(".p2align 6")
    kernel_desc("k2_gemm2_kernel", v2)
    open(OUT, "w").write("\n".join(L) + "\n")
    print("vgprs", v1, v2, "lines", len(L))


main()
```
